```python
import torch

def _softmax(x, axis=-1):
    return torch.softmax(x, dim=axis)
def _gelu(x):
    return torch.nn.functional.gelu(x, approximate="tanh")
def _silu(x):
    return torch.nn.functional.silu(x)
def _sigmoid(x):
    return torch.sigmoid(x)
def _layernorm(x, axis=-1, eps=1e-5):
    m = x.mean(dim=axis, keepdim=True)
    v = x.var(dim=axis, keepdim=True, unbiased=False)
    return (x - m) / torch.sqrt(v + eps)
def _scatter_add(tgt, idx, src, axis=0):
    return tgt.clone().index_add_(axis, idx, src)
def _segment_sum(src, seg, n):
    out = torch.zeros((n,) + src.shape[1:], dtype=src.dtype)
    return out.index_add_(0, seg, src)
def _pad(x, pw):
    flat = tuple(v for pair in reversed(pw) for v in pair)
    return torch.nn.functional.pad(x, flat)

kernel_name = 'recurrent_scan__sliding_block__moe_arch_mod__prompt'

def setup_inputs():

    _w = (lambda a: (lambda t: t.to(torch.bfloat16) if t.is_floating_point() else t)(torch.as_tensor(a)))
    def _A_setup():
        B, S, D = 1, 2048, 512
        return {
            "x": _w((lambda *s: torch.randn(*s, dtype=torch.bfloat16) * 0.05)(B, S, D)),
            "wqkv": _w((lambda *s: torch.randn(*s, dtype=torch.bfloat16) * 0.05)(D, 3 * D)),
            "wo": _w((lambda *s: torch.randn(*s, dtype=torch.bfloat16) * 0.05)(D, D)),
        }
    _A_in = _A_setup()

    def _B_setup():
        B, S, D, F, C = 1, 2048, 512, 1792, 8
        return {
            "x": _w((lambda *s: torch.randn(*s, dtype=torch.bfloat16) * 0.05)(B, S, D)),
            "w_r": _w((lambda *s: torch.randn(*s, dtype=torch.bfloat16) * 0.05)(D)),
            "w_gate": _w((lambda *s: torch.randn(*s, dtype=torch.bfloat16) * 0.05)(D, F)),
            "w_up": _w((lambda *s: torch.randn(*s, dtype=torch.bfloat16) * 0.05)(D, F)),
            "w_down": _w((lambda *s: torch.randn(*s, dtype=torch.bfloat16) * 0.05)(F, D)),
        }
    _B_in = _B_setup()

    return {
        "A_x": _A_in["x"],
        "A_wqkv": _A_in["wqkv"],
        "A_wo": _A_in["wo"],
        "B_x": _B_in["x"],
        "B_w_r": _B_in["w_r"],
        "B_w_gate": _B_in["w_gate"],
        "B_w_up": _B_in["w_up"],
        "B_w_down": _B_in["w_down"],
    }

def reference(A_x, A_wqkv, A_wo, B_x, B_w_r, B_w_gate, B_w_up, B_w_down):
    def _A_ref(x, wqkv, wo):
        B, S, D = x.shape
        H = 32; Dh = D // H; W = 256
        qkv = (lambda x, *d: x.permute(*d))((x @ wqkv).reshape(B, S, 3, H, Dh), 2, 0, 3, 1, 4)
        q, k, v = qkv[0], qkv[1], qkv[2]
        scores = torch.einsum("bhqd,bhkd->bhqk", q, k) * (Dh ** -0.5)
        idx = torch.arange(S)
        mask = (idx[:, None] - idx[None, :] >= 0) & (idx[:, None] - idx[None, :] < W)
        scores = torch.where(mask[None, None], scores, -1e9)
        p = _softmax(scores, axis=-1)
        o = torch.einsum("bhqk,bhkd->bhqd", p, v)
        return (lambda x, *d: x.permute(*d))(o, 0, 2, 1, 3).reshape(B, S, D) @ wo

    def _B_ref(x, w_r, w_gate, w_up, w_down):
        B, S, D = x.shape
        C = 8
        r = x @ w_r
        idx = torch.argsort(-r, axis=-1)[:, :C]
        idx_e = (lambda x, n, axis: torch.repeat_interleave(x, n, dim=axis))(idx.reshape(B, C, 1), D, axis=2)
        x_sel = (lambda x, i, axis: torch.take_along_dim(x, i, dim=axis))(x, idx_e, axis=1)
        g = _silu(x_sel @ w_gate)
        u = x_sel @ w_up
        y = (g * u) @ w_down
        r_sel = _sigmoid((lambda x, i, axis: torch.take_along_dim(x, i, dim=axis))(r, idx, axis=1))
        y = y * r_sel.reshape(B, C, 1)
        b_off = (torch.arange(B) * S).reshape(B, 1)
        flat_idx = (idx + b_off).reshape(B * C)
        zero = (x * 0.0).reshape(B * S, D)
        upd = _scatter_add(zero, flat_idx, y.reshape(B * C, D), axis=0)
        return x + upd.reshape(B, S, D)

    x = A_x
    xn = _layernorm(x, axis=-1)
    s = _A_ref(xn, A_wqkv, A_wo)
    g = _silu(_B_ref(xn, B_w_r, B_w_gate, B_w_up, B_w_down))
    return x + s * g
```

```python
import re

REG_RE = re.compile(r'^(-|\|)?([vsa])(\d+)\|?$')
RNG_RE = re.compile(r'^(-|\|)?([vsa])\[(\d+):(\d+)\]\|?$')
TRANS = ('v_exp_', 'v_log_', 'v_rcp_', 'v_rsq_', 'v_sqrt_', 'v_sin_', 'v_cos_')
DPPK = ('quad_perm', 'row_shl', 'row_shr', 'row_ror', 'wave_', 'row_mirror', 'row_half_mirror', 'row_bcast', 'row_newbcast')

def regs_of(tok):
    tok = tok.strip()
    if tok.startswith('neg(') or tok.startswith('abs('):
        tok = tok[4:-1]
    m = REG_RE.match(tok)
    if m: return {(m.group(2), int(m.group(3)))}
    m = RNG_RE.match(tok)
    if m: return {(m.group(2), i) for i in range(int(m.group(3)), int(m.group(4)) + 1)}
    if tok == 'vcc': return {('s', 106), ('s', 107)}
    if tok == 'vcc_lo': return {('s', 106)}
    if tok == 'vcc_hi': return {('s', 107)}
    if tok == 'exec': return {('x', 0), ('x', 1)}
    if tok == 'exec_lo': return {('x', 0)}
    if tok == 'exec_hi': return {('x', 1)}
    if tok == 'm0': return {('m', 0)}
    return set()

def split_ops(s):
    out, cur, d = [], '', 0
    for ch in s:
        if ch in '[(': d += 1
        if ch in '])': d -= 1
        if ch == ',' and d == 0: out.append(cur); cur = ''
        else: cur += ch
    if cur.strip(): out.append(cur)
    return [o.strip() for o in out]

class I:
    pass

def parse(text):
    t = text.split(';')[0].strip()
    i = I(); i.text = text
    mn, _, rest = t.partition(' ')
    i.mn = mn
    ops = split_ops(rest)
    mods = ''
    if ops:
        last = ops[-1].split(None, 1)
        if last:
            ops[-1] = last[0]
            mods = last[1] if len(last) > 1 else ''
    i.ops, i.mods = ops, mods
    R = [regs_of(o) for o in ops]
    U = lambda xs: set().union(*xs) if xs else set()
    i.w, i.r = set(), set()
    i.kind = 'other'; i.passes = 0; i.A = i.B = i.C = set(); i.ws = 1
    i.dpp = any(k in mods for k in DPPK)
    i.trans = mn.startswith(TRANS)
    i.wide_store = set()
    if mn == 's_nop':
        i.ws = int(ops[0], 0) + 1; i.kind = 'nop'
    elif mn.startswith('v_mfma'):
        i.kind = 'mfma'; i.w = R[0]; i.A, i.B, i.C = R[1], R[2], R[3]; i.r = U(R[1:])
        i.passes = 8 if '32x32' in mn else 4
    elif mn.startswith('v_'):
        i.kind = 'valu'
        if mn.startswith('v_cmpx'):
            i.w = {('x', 0), ('x', 1)} | R[0]; i.r = U(R[1:])
        elif mn.startswith(('v_add_co', 'v_sub_co', 'v_subrev_co', 'v_addc_co', 'v_subb_co', 'v_subbrev_co', 'v_div_scale', 'v_mad_u64', 'v_mad_i64')):
            i.w = R[0] | R[1]; i.r = U(R[2:])
        elif mn.startswith(('v_permlane16_swap', 'v_permlane32_swap', 'v_swap')):
            i.w = R[0] | R[1]; i.r = R[0] | R[1]
        elif mn.startswith(('v_fmac', 'v_dot2c', 'v_pk_fmac', 'v_mac', 'v_writelane')):
            i.w = R[0]; i.r = U(R)
        elif mn == 'v_nop':
            pass
        else:
            i.w = R[0]; i.r = U(R[1:])
            if i.dpp: i.r |= R[0]
    elif mn.startswith('ds_'):
        i.kind = 'ds'
        if mn.startswith(('ds_read', 'ds_bpermute', 'ds_permute', 'ds_swizzle')) or '_rtn' in mn:
            i.w = R[0]; i.r = U(R[1:])
        else: i.r = U(R)
    elif mn.startswith(('buffer_', 'global_')):
        i.kind = 'vmem'
        lds = ' lds' in (' ' + mods) or '_lds_' in mn
        i.lds = lds
        if lds: i.r = U(R) | {('m', 0)}
        elif '_load' in mn: i.w = R[0]; i.r = U(R[1:])
        elif 'atomic' in mn and ('sc0' in mods):
            i.w = R[0]; i.r = U(R)
        else:
            i.r = U(R)
            if mn.endswith(('x3', 'x4')):
                i.wide_store = R[0] if mn.startswith('buffer_') else R[1]
    elif mn.startswith('s_'):
        i.kind = 'salu'
        if mn.startswith(('s_cmp', 's_waitcnt', 's_barrier', 's_branch', 's_cbranch', 's_endpgm', 's_setprio', 's_sleep', 's_bitcmp', 's_setpc', 's_sethalt')):
            i.r = U(R)
        else:
            i.w = R[0] if R else set(); i.r = U(R[1:])
            if 'saveexec' in mn: i.w |= {('x', 0), ('x', 1)}
            if mn.startswith(('s_load', 's_buffer_load')): i.kind = 'smem'
    return i

def need(p, c):
    n = 0
    vw = {r for r in p.w if r[0] in 'va'}
    sw = {r for r in p.w if r[0] == 's'}
    xw = {r for r in p.w if r[0] == 'x'}
    if c is None:
        if p.kind == 'mfma': n = max(n, p.passes + 4)
        if p.kind == 'valu':
            if vw: n = max(n, 3 if p.mn.startswith('v_dot') else 2)
            if sw or xw: n = max(n, 5)
        if p.wide_store: n = max(n, 2)
        if p.kind == 'salu' and ('m', 0) in p.w: n = max(n, 1)
        return n
    if p.kind == 'mfma':
        if c.kind == 'mfma':
            if p.w & (c.A | c.B): n = max(n, p.passes + 4)
            if p.w & c.C:
                if not (p.w == c.C and p.passes == c.passes): n = max(n, p.passes + 2)
            elif p.w & c.w: n = max(n, p.passes + 4)
        elif c.kind in ('valu', 'vmem', 'ds'):
            if p.w & (c.r | c.w): n = max(n, p.passes + 4)
            if p.C & c.w: n = max(n, p.passes - 1)
    if p.kind == 'valu':
        if c.kind == 'mfma':
            if vw & c.r: n = max(n, 2)
            if xw: n = max(n, 4)
        if c.kind == 'vmem' and sw & c.r: n = max(n, 5)
        if c.kind == 'valu':
            if sw & c.r:
                n = max(n, 4 if c.mn.startswith(('v_readlane', 'v_writelane')) else 2)
            if vw & c.r:
                if c.dpp or c.mn.startswith('v_permlane'): n = max(n, 2)
                if c.mn.startswith(('v_readlane', 'v_readfirstlane')): n = max(n, 1)
                if p.trans and not c.trans: n = max(n, 1)
                if 'op_sel' in p.mods or 'sdwa' in p.mn: n = max(n, 1)
            if p.mn.startswith('v_dot') and (vw & (c.r | c.w)):
                if not (c.mn == p.mn and c.ops and regs_of(c.ops[-1]) == vw and not (vw & (regs_of(c.ops[1]) | regs_of(c.ops[2])))):
                    n = max(n, 3)
            if xw:
                if c.dpp: n = max(n, 5)
                if c.mn.startswith(('v_readlane', 'v_readfirstlane', 'v_writelane', 'v_permlane')): n = max(n, 4)
                if xw & c.r: n = max(n, 2)
        if p.mn.startswith('v_dot') and c.kind in ('mfma', 'vmem', 'ds') and (vw & c.r): n = max(n, 3)
        if p.trans and c.kind in ('vmem', 'ds') and (vw & c.r): n = max(n, 1)
    if p.wide_store and (p.wide_store & c.w): n = max(n, 2)
    if p.kind == 'salu' and ('m', 0) in p.w and ('m', 0) in c.r and c.kind in ('vmem', 'ds'): n = max(n, 1)
    return n

class K:
    def __init__(self):
        self.lines = []
        self.hist = []
        self.nops = 0
    def raw(self, s): self.lines.append(s)
    def c(self, s): self.lines.append('    ; ' + s)
    def _pad(self, c):
        dist = 0; req = 0
        for p in reversed(self.hist):
            req = max(req, need(p, c) - dist)
            dist += p.ws
            if dist > 14: break
        while req > 0:
            n = min(req, 8)
            self.lines.append('    s_nop %d' % (n - 1)); self.hist.append(parse('s_nop %d' % (n - 1)))
            self.nops += 1
            req -= n
    def e(self, text):
        for t in text.strip().split('\n'):
            t = t.strip()
            if not t or t.startswith(';'): continue
            i = parse(t)
            if i.mn.startswith(('s_branch', 's_cbranch', 's_setpc')): self._pad(None)
            else: self._pad(i)
            self.lines.append('    ' + t); self.hist.append(i)
            if len(self.hist) > 40: self.hist = self.hist[-20:]
    def label(self, name):
        self._pad(None)
        self.lines.append(name + ':')
    prof = False
    def stamp(self, i, real=False):
        if self.prof: self.e(f"{'s_memrealtime' if real else 's_memtime'} s[{84+2*i}:{85+2*i}]")
    def stamp_flush(self, base, swave, wsp=10):
        if not self.prof: return
        self.e("s_mov_b64 exec, 1\ns_waitcnt lgkmcnt(0)")
        for i in range(8): self.e(f"v_mov_b32 v{8+i}, s{84+2*i}")
        self.e(f"""s_lshl_b32 s100, s2, 3
        s_add_u32 s100, s100, s{swave}
        s_lshl_b32 s100, s100, 5
        s_add_u32 s100, s100, {base}
        v_mov_b32 v7, 0
        buffer_store_dwordx4 v[8:11], v7, s[20:23], s100 offen
        buffer_store_dwordx4 v[12:15], v7, s[20:23], s100 offen offset:16""")
    def text(self): return '\n'.join(self.lines) + '\n'

def vr(b, n=1): return 'v%d' % b if n == 1 else 'v[%d:%d]' % (b, b + n - 1)
def sr(b, n=1): return 's%d' % b if n == 1 else 's[%d:%d]' % (b, b + n - 1)
def ar(b, n=1): return 'a%d' % b if n == 1 else 'a[%d:%d]' % (b, b + n - 1)

def kd(name, nv, accum=None, ns=102):
    nv8 = (nv + 7) // 8 * 8
    acc = accum if accum is not None else (min(nv8, 256) + 3) // 4 * 4
    return f""".p2align 6
.amdhsa_kernel {name}
  .amdhsa_next_free_vgpr {nv8}
  .amdhsa_next_free_sgpr {ns}
  .amdhsa_accum_offset {acc}
  .amdhsa_group_segment_fixed_size 0
  .amdhsa_kernarg_size 88
  .amdhsa_user_sgpr_count 2
  .amdhsa_user_sgpr_kernarg_segment_ptr 1
  .amdhsa_system_sgpr_workgroup_id_x 1
.end_amdhsa_kernel
"""
```

```python
from asmlib import *

QF, KF, VF, OF = 0x000000, 0x200000, 0x400000, 0x600000
STAT, CAND, SEL, YP = 0x800000, 0x808000, 0x809000, 0x810000
TS1, TS2, TS3 = 0xA00000, 0xA10000, 0xA20000
QSCALE = 0.25 * 1.4426950408889634

def f32(x):
    import struct
    return '0x%08x' % struct.unpack('<I', struct.pack('<f', x))[0]

def wg_map(k, swg, sc, srb, st0, st1):
    k.e(f"""
    s_lshr_b32 {sr(st0)}, {sr(swg)}, 3
    s_and_b32 {sr(sc)}, {sr(swg)}, 1
    s_lshl_b32 {sr(sc)}, {sr(sc)}, 2
    s_and_b32 {sr(st1)}, {sr(st0)}, 3
    s_add_u32 {sr(sc)}, {sr(sc)}, {sr(st1)}
    s_bfe_u32 {sr(srb)}, {sr(swg)}, 0x20001
    s_lshl_b32 {sr(srb)}, {sr(srb)}, 3
    s_lshr_b32 {sr(st1)}, {sr(st0)}, 2
    s_add_u32 {sr(srb)}, {sr(srb)}, {sr(st1)}
    """)

def srd(k, d, p, size):
    k.e(f"""
    s_mov_b32 {sr(d)}, {sr(p)}
    s_mov_b32 {sr(d+1)}, {sr(p+1)}
    s_mov_b32 {sr(d+2)}, {size}
    s_mov_b32 {sr(d+3)}, 0x00020000
    """)

XR, WR = 0, 32768
W32, CS, LA, LNM, LKEY = 131072, 133120, 135168, 135424, 135680
K1_LDS = 136 * 1024

def gen_k1(k, name):
    k.raw(f".p2align 8\n.globl {name}\n.type {name},@function\n{name}:")
    SC, SRB, SROT, SW = 28, 29, 30, 31
    k.e(f"""
    s_cmp_ge_u32 s2, 256
    s_cbranch_scc1 {name}_end
    """)
    k.stamp(0, True); k.stamp(1)
    k.e(f"""
    s_load_dwordx4 s[4:7], s[0:1], 0
    s_load_dwordx2 s[8:9], s[0:1], 32
    s_load_dwordx2 s[10:11], s[0:1], 80
    v_lshrrev_b32 v1, 6, v0
    v_and_b32 v0, 63, v0
    """)
    wg_map(k, 2, SC, SRB, 32, 33)
    k.e(f"""
    v_readfirstlane_b32 {sr(SW)}, v1
    s_lshr_b32 s32, s2, 3
    s_and_b32 s33, s32, 3
    s_lshl_b32 s33, s33, 1
    s_lshr_b32 s32, s32, 2
    s_add_u32 {sr(SROT)}, s32, s33
    s_and_b32 {sr(SROT)}, {sr(SROT)}, 7
    s_cmp_ge_u32 {sr(SW)}, 4
    s_cbranch_scc1 {name}_loader
    """)
    AQ, AK, AV, AC, BP, XF, WF = 16, 32, 48, 64, 68, 80, 88
    XA, WA = 2, 6
    SRH, SHP = 32, 33
    k.e(f"""
    s_and_b32 {sr(SRH)}, {sr(SW)}, 1
    s_lshr_b32 {sr(SHP)}, {sr(SW)}, 1
    v_and_b32 v10, 31, v0
    v_lshrrev_b32 v11, 5, v0
    v_bfe_u32 v12, v0, 1, 3
    v_xor_b32 v12, v12, v11
    s_lshl_b32 s34, {sr(SRH)}, 12
    s_lshl_b32 s35, {sr(SRH)}, 6
    v_lshlrev_b32 v12, 4, v12
    v_lshl_add_u32 v12, v10, 7, v12
    v_add_u32 v12, s34, v12
    v_xor_b32 v{XA}, s35, v12
    v_xor_b32 v{XA+1}, 32, v{XA}
    v_xor_b32 v{XA+2}, 64, v{XA}
    v_xor_b32 v{XA+3}, 96, v{XA}
    """)
    k.e(f"""
    v_bfe_u32 v12, v0, 2, 2
    v_lshlrev_b32 v13, 7, v12
    v_mul_u32_u24 v14, 3072, v11
    v_add_u32 v13, v13, v14
    v_lshrrev_b32 v12, 1, v12
    v_xor_b32 v12, {sr(SHP)}, v12
    v_lshl_add_u32 v13, v12, 6, v13
    v_bfe_u32 v12, v0, 4, 1
    v_lshl_add_u32 v13, v12, 5, v13
    v_and_b32 v12, 3, v0
    v_lshl_add_u32 v13, v12, 3, v13
    s_mul_i32 s34, {sr(SRH)}, 12288
    s_add_u32 s35, s34, {WR}
    s_sub_u32 s36, {WR}, s34
    v_add_u32 v{WA}, s35, v13
    v_add_u32 v{WA+1}, s36, v13
    v_add_u32 v{WA+2}, 49152, v{WA}
    v_add_u32 v{WA+3}, 49152, v{WA+1}
    """)
    k.e(f"""
    v_and_b32 v12, 15, v0
    v_bfe_u32 v13, v0, 4, 1
    v_sub_u32 v12, v12, v13
    v_mov_b32 v14, 0x3f803f80
    """)
    for b in range(3):
        k.e(f"v_cmp_eq_u32 vcc, {2*b}, v12")
        for r in range(4):
            k.e(f"v_cndmask_b32 v{BP+4*b+r}, 0, v14, vcc")
    k.e("s_waitcnt lgkmcnt(0)")
    srd(k, 20, 10, '0x10000000')

    def reads(i, s):
        slot = i & 3; b = s & 1
        k.e(f"ds_read_b128 {vr(XF+4*b,4)}, v{XA+s} offset:{slot*8192}")
        base = WA + 2 * (slot >> 1) + (s >> 1)
        for seg in range(3):
            off = (slot & 1) * 24576 + s * 6144 + seg * 1024
            d = WF + 12 * b + 4 * seg
            k.e(f"ds_read_b64_tr_b16 {vr(d,2)}, v{base} offset:{off}")
            k.e(f"ds_read_b64_tr_b16 {vr(d+2,2)}, v{base} offset:{off+512}")
    def mfmas(i, s):
        b = s & 1; x = vr(XF + 4 * b, 4); w = lambda seg: vr(WF + 12 * b + 4 * seg, 4)
        first = (i == 0 and s == 0)
        cq, ck, cv = [('0' if first else vr(a, 16)) for a in (AQ, AK, AV)]
        k.e(f"v_mfma_f32_32x32x16_bf16 {vr(AQ,16)}, {w(0)}, {x}, {cq}")
        if s < 2: k.e(f"v_mfma_f32_16x16x32_bf16 {vr(AC,4)}, {w(0)}, {vr(BP,4)}, {'0' if first else vr(AC,4)}")
        k.e(f"v_mfma_f32_32x32x16_bf16 {vr(AK,16)}, {w(1)}, {x}, {ck}")
        if s < 2: k.e(f"v_mfma_f32_16x16x32_bf16 {vr(AC,4)}, {w(1)}, {vr(BP+4,4)}, {vr(AC,4)}")
        k.e(f"v_mfma_f32_32x32x16_bf16 {vr(AV,16)}, {x}, {w(2)}, {cv}")
        if s < 2: k.e(f"v_mfma_f32_16x16x32_bf16 {vr(AC,4)}, {w(2)}, {vr(BP+8,4)}, {vr(AC,4)}")
    k.e("s_barrier")
    k.stamp(2)
    reads(0, 0); reads(0, 1)
    for i in range(8):
        k.e("s_waitcnt lgkmcnt(7)"); mfmas(i, 0); reads(i, 2)
        k.e("s_waitcnt lgkmcnt(7)"); mfmas(i, 1); reads(i, 3)
        k.e("s_waitcnt lgkmcnt(7)"); mfmas(i, 2)
        if i < 7:
            k.e("s_waitcnt lgkmcnt(0)\ns_barrier")
            if i == 6: k.stamp(3)
            reads(i + 1, 0); mfmas(i, 3); reads(i + 1, 1)
        else:
            k.e(f"""
            v_and_b32 v10, 15, v0
            v_lshlrev_b32 v10, 6, v10
            v_lshrrev_b32 v11, 4, v0
            v_lshl_add_u32 v10, v11, 4, v10
            s_lshl_b32 s34, {sr(SHP)}, 10
            s_add_u32 s34, s34, {CS}
            v_add_u32 v10, s34, v10
            """)
            for r in range(4): k.e(f"ds_add_f32 v10, v{AC+r} offset:{4*r}")
            k.e("s_waitcnt lgkmcnt(4)"); mfmas(i, 3)
    CQ, CK, VA, VN = 80, 96, 112, 128
    k.e(f"""
    v_lshrrev_b32 v11, 5, v0
    v_lshlrev_b32 v11, 4, v11
    v_add_u32 v2, s34, v11
    v_and_b32 v10, 31, v0
    v_lshlrev_b32 v12, 2, v10
    v_add_u32 v3, s34, v12
    s_lshl_b32 s35, {sr(SRH)}, 7
    s_add_u32 s35, s35, {LA}
    v_add_u32 v4, s35, v12
    v_add_u32 v5, s35, v11
    s_waitcnt lgkmcnt(0)
    """)
    k.stamp(4)
    k.e("s_barrier")
    k.stamp(5)
    k.e(f"""
    ds_read_b32 v6, v4
    ds_read_b32 v8, v4 offset:256
    """)
    for i in range(4): k.e(f"ds_read_b128 {vr(CQ+4*i,4)}, v2 offset:{32*i}")
    for i in range(4): k.e(f"ds_read_b128 {vr(CK+4*i,4)}, v2 offset:{128+32*i}")
    k.e("ds_read_b32 v14, v3 offset:256")
    for i in range(4): k.e(f"ds_read_b128 {vr(VN+4*i,4)}, v5 offset:{256+32*i}")
    k.e(f"""
    s_lshl_b32 s34, {sr(SC)}, 2
    s_lshl_b32 s35, {sr(SHP)}, 1
    s_add_u32 s34, s34, s35
    s_lshl_b32 s34, s34, 16
    s_lshl_b32 s35, {sr(SRB)}, 1
    s_add_u32 s35, s35, {sr(SRH)}
    s_lshl_b32 s35, s35, 10
    s_add_u32 s34, s34, s35
    s_add_u32 s35, s34, 0x10000
    s_add_u32 s36, s34, {KF}
    s_add_u32 s37, s35, {KF}
    s_add_u32 s38, s34, {VF}
    v_lshlrev_b32 v2, 4, v0
    v_bfe_u32 v3, v0, 4, 1
    v_lshlrev_b32 v3, 16, v3
    v_lshl_add_u32 v3, v11, 4, v3
    v_and_b32 v4, 15, v0
    v_lshl_add_u32 v3, v4, 4, v3
    s_waitcnt lgkmcnt(9)
    ds_read_b128 {vr(VA,4)}, v5
    ds_read_b128 {vr(VA+4,4)}, v5 offset:32
    ds_read_b128 {vr(VA+8,4)}, v5 offset:64
    ds_read_b128 {vr(VA+12,4)}, v5 offset:96
    v_mov_b32 v9, v8
    v_mov_b32 v7, v6
    v_mul_f32 v12, {f32(QSCALE)}, v6
    v_mul_f32 v13, {f32(QSCALE)}, v6
    """)
    def fin(acc, cs2, nm2, a2, lg):
        for i in range(8):
            if i % 2 == 0 and lg is not None: k.e(f"s_waitcnt lgkmcnt({lg - i // 2})")
            k.e(f"v_pk_fma_f32 {vr(acc+2*i,2)}, {cs2(i)}, {nm2(i)}, {vr(acc+2*i,2)}")
        for i in range(8):
            k.e(f"v_pk_mul_f32 {vr(acc+2*i,2)}, {vr(acc+2*i,2)}, {a2(i)}")
        for i in range(8):
            k.e(f"v_cvt_pk_bf16_f32 v{acc+i}, v{acc+2*i}, v{acc+2*i+1}")
    fin(AQ, lambda i: vr(CQ + 2 * i, 2), lambda i: 'v[8:9]', lambda i: 'v[12:13]', None)
    k.e(f"""
    buffer_store_dwordx4 {vr(AQ,4)}, v2, s[20:23], s34 offen
    buffer_store_dwordx4 {vr(AQ+4,4)}, v2, s[20:23], s35 offen
    s_waitcnt lgkmcnt(9)
    """)
    fin(AK, lambda i: vr(CK + 2 * i, 2), lambda i: 'v[8:9]', lambda i: 'v[6:7]', None)
    k.e(f"""
    buffer_store_dwordx4 {vr(AK,4)}, v2, s[20:23], s36 offen
    buffer_store_dwordx4 {vr(AK+4,4)}, v2, s[20:23], s37 offen
    s_waitcnt lgkmcnt(0)
    v_mov_b32 v15, v14
    """)
    fin(AV, lambda i: 'v[14:15]', lambda i: vr(VN + 2 * i, 2), lambda i: vr(VA + 2 * i, 2), None)
    k.e(f"""
    buffer_store_dwordx4 {vr(AV,4)}, v3, s[20:23], s38 offen
    buffer_store_dwordx4 {vr(AV+4,4)}, v3, s[20:23], s38 offen offset:512
    """)
    k.stamp(6); k.stamp(7, True); k.stamp_flush(TS1, SW)
    k.e("s_endpgm")
    k.label(f"{name}_loader")
    SLW = 32
    VX0, VX1, VW = 2, 3, 4
    k.e(f"""
    s_sub_u32 {sr(SLW)}, {sr(SW)}, 4
    v_lshrrev_b32 v10, 3, v0
    v_and_b32 v11, 7, v0
    v_lshrrev_b32 v12, 1, v10
    v_xor_b32 v13, v11, v12
    v_lshlrev_b32 v13, 4, v13
    v_lshl_add_u32 v{VX0}, v10, 10, v13
    s_lshl_b32 s33, {sr(SRB)}, 16
    s_lshl_b32 s34, {sr(SLW)}, 14
    s_add_u32 s33, s33, s34
    v_add_u32 v{VX0}, s33, v{VX0}
    v_xor_b32 v{VX1}, 64, v{VX0}
    v_add_u32 v{VX1}, 8192, v{VX1}
    v_and_b32 v12, 1, v12
    v_lshlrev_b32 v12, 2, v12
    v_xor_b32 v13, v11, v12
    v_lshlrev_b32 v13, 4, v13
    v_mul_u32_u24 v{VW}, 3072, v10
    v_add_u32 v{VW}, v{VW}, v13
    s_mul_i32 s33, {sr(SLW)}, 49152
    s_lshl_b32 s34, {sr(SC)}, 7
    s_add_u32 s33, s33, s34
    v_add_u32 v{VW}, s33, v{VW}
    s_lshl_b32 s35, {sr(SLW)}, 11
    s_mul_i32 s36, {sr(SLW)}, 6144
    s_add_u32 s36, s36, {WR}
    v_lshlrev_b32 v5, 4, v0
    s_waitcnt lgkmcnt(0)
    """)
    srd(k, 12, 4, '0x200000'); srd(k, 16, 6, '0x180000'); srd(k, 24, 8, '0x400'); srd(k, 20, 10, '0x10000000')
    k.e("buffer_load_dwordx4 v[16:19], v5, s[24:27], 0 offen")
    def issue(i):
        slot = i & 3
        k.e(f"""
        s_add_u32 s37, {sr(SROT)}, {i}
        s_and_b32 s37, s37, 7
        s_lshl_b32 s38, s37, 7
        s_mul_i32 s39, s37, 196608
        s_add_u32 s40, s39, 24576
        s_add_u32 m0, s35, {slot*8192}
        buffer_load_dwordx4 v{VX0}, s[12:15], s38 offen lds
        s_add_u32 m0, s35, {slot*8192+1024}
        buffer_load_dwordx4 v{VX1}, s[12:15], s38 offen lds
        s_add_u32 m0, s36, {slot*24576}
        buffer_load_dwordx4 v{VW}, s[16:19], s39 offen lds
        buffer_load_dwordx4 v{VW}, s[16:19], s39 offen offset:1024 lds
        buffer_load_dwordx4 v{VW}, s[16:19], s39 offen offset:2048 lds
        s_add_u32 m0, s36, {slot*24576+3072}
        buffer_load_dwordx4 v{VW}, s[16:19], s40 offen lds
        buffer_load_dwordx4 v{VW}, s[16:19], s40 offen offset:1024 lds
        buffer_load_dwordx4 v{VW}, s[16:19], s40 offen offset:2048 lds
        """)
    k.stamp(2)
    for i in range(4): issue(i)
    k.stamp(3)
    SX, SQ, SRW, SUMW = 6, 8, 10, 12
    A0, A1, B0, B1 = 14, 15, 40, 41
    k.e(f"""
    v_mov_b32 v20, 0
    v_mov_b32 v21, 0
    v_lshlrev_b32 v22, 3, v0
    s_lshl_b32 s33, {sr(SLW)}, 9
    s_add_u32 s33, s33, {CS}
    v_add_u32 v22, s33, v22
    ds_write_b64 v22, v[20:21]
    v_lshrrev_b32 v20, 2, v0
    v_and_b32 v21, 3, v0
    v_bfe_u32 v22, v20, 1, 3
    v_and_b32 v23, 1, v22
    v_lshl_add_u32 v21, v23, 2, v21
    v_lshlrev_b32 v{A0}, 4, v21
    v_lshl_add_u32 v{A0}, v20, 7, v{A0}
    v_add_u32 v{A0}, s35, v{A0}
    v_xor_b32 v{A1}, 64, v{A0}
    v_xor_b32 v21, v21, v22
    v_lshlrev_b32 v{B0}, 5, v21
    v_add_u32 v{B0}, {W32}, v{B0}
    v_xor_b32 v{B1}, 128, v{B0}
    s_lshl_b32 s33, {sr(SROT)}, 8
    v_lshlrev_b32 v20, 5, v0
    v_subrev_u32 v20, s33, v20
    v_and_b32 v20, 2047, v20
    v_add_u32 v20, {W32}, v20
    s_waitcnt vmcnt(32)
    """)
    for j in range(4):
        k.e(f"v_lshlrev_b32 v{24+2*j}, 16, v{16+j}\nv_and_b32 v{25+2*j}, 0xffff0000, v{16+j}")
    k.e(f"""
    s_cmp_lg_u32 {sr(SLW)}, 0
    s_cbranch_scc1 {name}_now32
    ds_write_b128 v20, v[24:27]
    ds_write_b128 v20, v[28:31] offset:16
    """)
    k.label(f"{name}_now32")
    k.e(f"""
    v_add_f32 v24, v24, v25
    v_add_f32 v26, v26, v27
    v_add_f32 v28, v28, v29
    v_add_f32 v30, v30, v31
    v_add_f32 v24, v24, v26
    v_add_f32 v28, v28, v30
    v_add_f32 v24, v24, v28
    v_add_f32_dpp v24, v24, v24 quad_perm:[1,0,3,2] row_mask:0xf bank_mask:0xf
    v_add_f32_dpp v24, v24, v24 quad_perm:[2,3,0,1] row_mask:0xf bank_mask:0xf
    v_add_f32_dpp v24, v24, v24 row_half_mirror row_mask:0xf bank_mask:0xf
    v_add_f32_dpp v24, v24, v24 row_mirror row_mask:0xf bank_mask:0xf
    v_readlane_b32 s41, v24, 0
    v_readlane_b32 s42, v24, 16
    v_readlane_b32 s43, v24, 32
    v_readlane_b32 s44, v24, 48
    v_mov_b32 v{SUMW}, s41
    v_add_f32 v{SUMW}, s42, v{SUMW}
    v_add_f32 v{SUMW}, s43, v{SUMW}
    v_add_f32 v{SUMW}, s44, v{SUMW}
    """)
    for r in (SX, SX + 1, SQ, SQ + 1, SRW, SRW + 1): k.e(f"v_mov_b32 v{r}, 0")
    XD, WD, T = 16, 24, 42
    vm = [24, 16, 16, 16, 16, 16, 8, 0]
    for i in range(8):
        slot = i & 3
        k.e(f"s_waitcnt vmcnt({vm[i]}) lgkmcnt(0)\ns_barrier")
        if i == 0: k.stamp(4)
        if i == 7: k.stamp(5)
        if 1 <= i <= 4: issue(i + 3)
        k.e(f"""
        ds_read_b128 {vr(XD,4)}, v{A0} offset:{slot*8192}
        ds_read_b128 {vr(WD,4)}, v{B0} offset:{i*256}
        ds_read_b128 {vr(WD+4,4)}, v{B0} offset:{i*256+16}
        ds_read_b128 {vr(XD+4,4)}, v{A1} offset:{slot*8192}
        ds_read_b128 {vr(WD+8,4)}, v{B1} offset:{i*256}
        ds_read_b128 {vr(WD+12,4)}, v{B1} offset:{i*256+16}
        """)
        for j in range(8):
            if j == 0: k.e("s_waitcnt lgkmcnt(3)")
            if j == 4: k.e("s_waitcnt lgkmcnt(0)")
            t = T + 2 * (j & 1)
            k.e(f"""
            v_lshlrev_b32 v{t}, 16, v{XD+j}
            v_and_b32 v{t+1}, 0xffff0000, v{XD+j}
            v_add_f32 v{SX}, v{SX}, v{t}
            v_add_f32 v{SX+1}, v{SX+1}, v{t+1}
            v_fmac_f32 v{SQ}, v{t}, v{t}
            v_fmac_f32 v{SQ+1}, v{t+1}, v{t+1}
            v_fmac_f32 v{SRW}, v{t}, v{WD+2*j}
            v_fmac_f32 v{SRW+1}, v{t+1}, v{WD+2*j+1}
            """)
    k.e(f"""
    v_add_f32 v{SX}, v{SX}, v{SX+1}
    v_add_f32 v{SQ}, v{SQ}, v{SQ+1}
    v_add_f32 v{SRW}, v{SRW}, v{SRW+1}
    """)
    for qp in ('[1,0,3,2]', '[2,3,0,1]'):
        for r in (SX, SQ, SRW):
            k.e(f"v_add_f32_dpp v{r}, v{r}, v{r} quad_perm:{qp} row_mask:0xf bank_mask:0xf")
    k.e(f"""
    v_mul_f32 v16, {f32(1/512)}, v{SX}
    v_mul_f32 v17, {f32(1/512)}, v{SQ}
    v_fma_f32 v17, -v16, v16, v17
    v_max_f32 v17, 0, v17
    v_cvt_pk_bf16_f32 v18, v16, v17
    v_lshlrev_b32 v16, 16, v18
    v_and_b32 v17, 0xffff0000, v18
    v_add_f32 v17, {f32(1e-5)}, v17
    v_cvt_pk_bf16_f32 v17, v17, v17
    v_lshlrev_b32 v17, 16, v17
    v_sqrt_f32 v17, v17
    v_xor_b32 v16, 0x80000000, v16
    v_cvt_pk_bf16_f32 v17, v17, v17
    v_lshlrev_b32 v17, 16, v17
    v_rcp_f32 v17, v17
    v_lshrrev_b32 v20, 2, v0
    s_lshl_b32 s33, {sr(SLW)}, 4
    v_add_u32 v20, s33, v20
    v_lshlrev_b32 v21, 2, v20
    v_add_u32 v21, {LA}, v21
    v_fma_f32 v18, v16, v{SUMW}, v{SRW}
    v_mul_f32 v18, v18, v17
    ds_write_b32 v21, v17
    ds_write_b32 v21, v16 offset:256
    v_ashrrev_i32 v19, 31, v18
    v_or_b32 v19, 0x80000000, v19
    v_xor_b32 v18, v18, v19
    v_and_b32 v18, 0xfffff800, v18
    s_lshl_b32 s33, {sr(SRB)}, 6
    v_add_u32 v20, s33, v20
    v_sub_u32 v19, 2047, v20
    v_or_b32 v18, v18, v19
    ds_write_b32 v21, v18 offset:512
    s_waitcnt lgkmcnt(0)
    """)
    k.stamp(6); k.stamp(7, True)
    k.e("s_barrier")
    if k.prof:
        k.e("v_mov_b32 v40, v16\nv_mov_b32 v41, v17")
        k.stamp_flush(TS1, SW)
        k.e("s_mov_b64 exec, -1\nv_mov_b32 v16, v40\nv_mov_b32 v17, v41")
    k.e(f"""
    s_and_b32 s33, {sr(SRB)}, 7
    s_cmp_lg_u32 s33, {sr(SC)}
    s_cbranch_scc1 {name}_end
    v_and_b32 v21, 3, v0
    v_lshlrev_b32 v22, 6, v21
    v_add_u32 v22, {LKEY}, v22
    """)
    for i in range(4): k.e(f"ds_read_b128 {vr(24+4*i,4)}, v22 offset:{16*i}")
    k.e(f"""
    v_lshlrev_b32 v20, 3, v20
    v_add_u32 v20, {STAT}, v20
    v_cmp_eq_u32 vcc, 0, v21
    s_and_saveexec_b64 s[44:45], vcc
    buffer_store_dwordx2 v[16:17], v20, s[20:23], 0 offen
    s_mov_b64 exec, s[44:45]
    v_mov_b32 v19, 0
    s_waitcnt lgkmcnt(0)
    """)
    for i in range(16):
        k.e(f"v_cmp_gt_u32 vcc, v{24+i}, v18\nv_addc_co_u32 v19, vcc, 0, v19, vcc")
    for qp in ('[1,0,3,2]', '[2,3,0,1]'):
        k.e(f"v_add_u32_dpp v19, v19, v19 quad_perm:{qp} row_mask:0xf bank_mask:0xf")
    k.e(f"""
    s_lshl_b32 s33, {sr(SRB)}, 5
    s_add_u32 s33, s33, {CAND}
    v_lshlrev_b32 v20, 2, v19
    v_lshl_add_u32 v19, v21, 8, v19
    v_cmp_gt_u32 vcc, 8, v19
    s_and_saveexec_b64 s[44:45], vcc
    s_cbranch_execz {name}_end
    buffer_store_dword v18, v20, s[20:23], s33 offen
    """)
    k.label(f"{name}_end")
    k.e("s_endpgm")
    return kd(name, 144)
```

```python
from asmlib import *
from k1 import *

NFFN = 56
FG, FRED, FCNT = 0, 98304, 114688
K2_LDS = 116 * 1024
NBIG = '0xf149f2ca'

Q, KR, V, C, O, SB, M, MX = 8, 16, 56, 136, 152, 168, 216, 224
SMASK = 40
SU = 29

def attn_body(k, name, slow):
    S = lambda b: SB + 16 * b
    kf = lambda j: vr(KR + 4 * j, 4)
    uid = [0]
    def setC(val):
        for r in range(16): k.e(f"v_mov_b32 v{C+r}, {val}")
    def switch(j):
        if slow and j in (7, 5, 3, 1):
            uid[0] += 1; L = f"{name}_sw{uid[0]}"
            k.e(f"s_cmp_lg_u32 {sr(SU)}, {(7-j)//2}\ns_cbranch_scc1 {L}")
            setC(NBIG); k.label(L)
    def qk(b, j, a, c):
        k.e(f"v_mfma_f32_32x32x16_bf16 {vr(S(b),16)}, {kf(j)}, {vr(Q+4*a,4)}, {c}")
    def first(b, j, a, c):
        if slow:
            for r in range(16): k.e(f"v_mov_b32 v{S(b)+r}, {NBIG}")
        else: qk(b, j, a, c)
    def merge(bd, bf):
        for r in range(16):
            k.e(f"v_cndmask_b32_e64 v{S(bd)+r}, v{S(bf)+r}, v{S(bd)+r}, {sr(SMASK+2*r,2)}")
    for a in range(2):
        jd, jf = 8 + a, a
        mids = list(range(jd - 1, jf, -1))
        c1 = vr(C, 16) if slow else '0'
        if slow: setC(0)
        if a == 0: k.e("s_waitcnt vmcnt(29)")
        else: k.e("s_waitcnt vmcnt(20)")
        k.stamp(2 + 2 * a)
        qk(0, jd, a, c1); first(1, jf, a, c1)
        if a == 0: k.e("s_waitcnt vmcnt(28)")
        switch(mids[0]); qk(2, mids[0], a, c1)
        merge(0, 1)
        bufs = [0, 2, 1]
        for t in range(8):
            cur = bufs[t % 3]; nn = bufs[(t + 2) % 3]
            if t + 1 < 7:
                if a == 0: k.e(f"s_waitcnt vmcnt({27 - t})")
                switch(mids[t + 1]); qk(nn, mids[t + 1], a, c1)
            for i in range(8):
                s0, s1 = S(cur) + 2 * i, S(cur) + 2 * i + 1
                m = MX + (i & 1)
                if t == 0 and i < 2: k.e(f"v_max_f32 v{m}, v{s0}, v{s1}")
                else: k.e(f"v_max3_f32 v{m}, v{s0}, v{s1}, v{m}")
        k.e(f"""
        v_max_f32 v{MX}, v{MX}, v{MX+1}
        v_mov_b32 v{MX+1}, v{MX}
        v_permlane32_swap_b32 v{MX}, v{MX+1}
        v_max_f32 v{MX}, v{MX}, v{MX+1}
        v_xor_b32 v{C}, 0x80000000, v{MX}
        """)
        for r in range(1, 16): k.e(f"v_mov_b32 v{C+r}, v{C}")
        c2 = vr(C, 16)
        k.stamp(3 + 2 * a)
        qk(0, jd, a, c2); first(1, jf, a, c2)
        switch(mids[0]); qk(2, mids[0], a, c2)
        merge(0, 1)
        if a == 0: k.e("s_waitcnt vmcnt(0)")
        pend = []
        ofirst = [True]
        def pv(j, half, preg):
            c = '0' if ofirst[0] else vr(O, 16); ofirst[0] = False
            return f"v_mfma_f32_32x32x16_bf16 {vr(O,16)}, {vr(V+8*j+4*half,4)}, {vr(preg,4)}, {c}"
        for t in range(8):
            cur = bufs[t % 3]; nn = bufs[(t + 2) % 3]; sb = S(cur)
            slots = list(pend); pend = []
            nq = None
            if t + 1 < 7: nq = mids[t + 1]
            seq = slots + ([('qk', nq)] if nq is not None else [])
            per = 16 // (len(seq) + 1) if seq else 16
            e = 0
            for x in seq:
                for _ in range(per): k.e(f"v_exp_f32 v{sb+e}, v{sb+e}"); e += 1
                if isinstance(x, tuple): switch(x[1]); qk(nn, x[1], a, c2)
                else: k.e(x)
            while e < 16: k.e(f"v_exp_f32 v{sb+e}, v{sb+e}"); e += 1
            for i in range(8): k.e(f"v_cvt_pk_bf16_f32 v{sb+i}, v{sb+2*i}, v{sb+2*i+1}")
            if t == 0:
                for i in range(8): k.e(f"v_and_b32 v{sb+8+i}, v{sb+i}, v{M+i}")
                for i in range(8): k.e(f"v_xor_b32 v{sb+i}, v{sb+i}, v{sb+8+i}")
                pend = [pv(jd, 0, sb + 8), pv(jd, 1, sb + 12), pv(jf, 0, sb), pv(jf, 1, sb + 4)]
            else:
                pend = [pv(mids[t - 1], 0, sb), pv(mids[t - 1], 1, sb + 4)]
        for x in pend: k.e(x)
        k.e(f"v_rcp_f32 v{MX}, v{O+8}")
        for r in range(8): k.e(f"v_mul_f32 v{O+r}, v{O+r}, v{MX}")
        T = 228
        for i in range(4): k.e(f"v_cvt_pk_bf16_f32 v{T+i}, v{O+2*i}, v{O+2*i+1}")
        k.e(f"buffer_store_dwordx4 {vr(T,4)}, v1, s[20:23], s{36+a} offen")
    k.stamp(6); k.stamp(7, True); k.stamp_flush(TS2, 31)
    k.e("s_endpgm")

def gen_k2(k, name):
    k.raw(f".p2align 8\n.globl {name}\n.type {name},@function\n{name}:")
    SC, SW = 28, 31
    k.e(f"""
    s_cmp_ge_u32 s2, 256
    s_cbranch_scc1 {name}_end
    """)
    k.stamp(0, True); k.stamp(1)
    k.e(f"""
    s_load_dwordx2 s[10:11], s[0:1], 80
    s_load_dwordx2 s[4:5], s[0:1], 0
    s_load_dwordx4 s[72:75], s[0:1], 40
    s_load_dwordx2 s[76:77], s[0:1], 56
    v_lshrrev_b32 v1, 6, v0
    v_and_b32 v0, 63, v0
    """)
    wg_map(k, 2, SC, SU, 32, 33)
    k.e(f"""
    v_readfirstlane_b32 {sr(SW)}, v1
    s_cmp_ge_u32 {sr(SW)}, 4
    s_cbranch_scc1 {name}_ffn
    v_lshlrev_b32 v1, 4, v0
    s_lshl_b32 s32, {sr(SC)}, 2
    s_add_u32 s32, s32, {sr(SW)}
    s_lshl_b32 s33, s32, 16
    s_lshl_b32 s34, {sr(SU)}, 11
    s_add_u32 s33, s33, s34
    s_add_u32 s34, s33, {KF - 8192}
    s_add_u32 s35, s34, 4096
    s_add_u32 s38, s34, 8192
    s_lshl_b32 s36, {sr(SU)}, 16
    s_lshl_b32 s37, s32, 10
    s_add_u32 s36, s36, s37
    s_add_u32 s36, s36, {OF}
    s_add_u32 s37, s36, 32768
    v_lshrrev_b32 v2, 5, v0
    v_lshlrev_b32 v2, 8, v2
    v_and_b32 v3, 15, v0
    v_lshl_add_u32 v2, v3, 4, v2
    v_add_u32 v2, {VF-KF}, v2
    s_waitcnt lgkmcnt(0)
    """)
    srd(k, 20, 10, '0x10000000')
    def ldk(j):
        sb = [34, 35, 38][j // 4]
        k.e(f"buffer_load_dwordx4 {vr(KR+4*j,4)}, v1, s[20:23], s{sb} offen offset:{(j%4)*1024}")
    k.e(f"buffer_load_dwordx4 {vr(Q,4)}, v1, s[20:23], s33 offen")
    for j in (8, 0, 7, 6, 5, 4, 3, 2, 1): ldk(j)
    k.e(f"buffer_load_dwordx4 {vr(Q+4,4)}, v1, s[20:23], s33 offen offset:1024")
    ldk(9)
    k.e("s_mov_b32 s78, 0xffff0000\ns_mov_b32 s79, 0xffff0000\ns_mov_b64 exec, s[78:79]")
    for r in range(80): k.e(f"v_mov_b32 v{V+r}, 0x3f803f80")
    k.e("s_not_b64 exec, exec")
    for j in (8, 0, 7, 6, 5, 4, 3, 2, 1, 9):
        sb = [34, 35, 38][j // 4]
        for hf in range(2):
            k.e(f"buffer_load_dwordx4 {vr(V+8*j+4*hf,4)}, v2, s[20:23], s{sb} offen offset:{(j%4)*1024+hf*512}")
    k.e("s_mov_b64 exec, -1\ns_barrier")
    for r in range(16):
        k0 = 8 * (r >> 2) + (r & 3)
        k.e(f"s_mov_b32 s{SMASK+2*r}, 0x{(0xffffffff << k0) & 0xffffffff:08x}\ns_mov_b32 s{SMASK+2*r+1}, 0x{(0xffffffff << (k0+4)) & 0xffffffff:08x}")
    k.e("v_mov_b32 v3, 0xffff\nv_mov_b32 v4, 0xffff0000")
    for i in range(8):
        k.e(f"""
        v_cndmask_b32_e64 v5, 0, v3, {sr(SMASK+4*i,2)}
        v_cndmask_b32_e64 v6, 0, v4, {sr(SMASK+4*i+2,2)}
        v_or_b32 v{M+i}, v5, v6
        """)
    k.e(f"s_cmp_lt_u32 {sr(SU)}, 4\ns_cbranch_scc1 {name}_slow")
    attn_body(k, name + '_f', False)
    k.label(f"{name}_slow")
    attn_body(k, name + '_s', True)
    k.label(f"{name}_ffn")
    SF = 2
    k.e(f"""
    s_cmp_ge_u32 s2, {NFFN}
    s_cbranch_scc1 {name}_end
    s_sub_u32 {sr(SW)}, {sr(SW)}, 4
    v_and_b32 v2, 15, v0
    v_lshlrev_b32 v3, 6, v2
    v_add_u32 v3, {CAND}, v3
    v_mov_b32 v4, {FCNT}
    v_mov_b32 v5, 0
    ds_write_b32 v4, v5
    v_lshrrev_b32 v6, 2, v0
    v_and_b32 v7, 3, v0
    v_lshrrev_b32 v8, 5, v0
    v_lshlrev_b32 v8, 1, v8
    v_xor_b32 v7, v7, v8
    v_mul_u32_u24 v6, 3584, v6
    v_lshl_add_u32 v6, v7, 4, v6
    s_mul_i32 s32, {sr(SW)}, {128*3584}
    s_lshl_b32 s33, s2, 6
    s_add_u32 s32, s32, s33
    v_add_u32 v6, s32, v6
    v_lshrrev_b32 v7, 4, v0
    v_lshlrev_b32 v8, 1, v7
    v_xor_b32 v8, v2, v8
    v_lshlrev_b32 v8, 4, v8
    v_lshl_add_u32 v7, v7, 10, v8
    s_lshl_b32 s32, s2, 15
    s_lshl_b32 s33, {sr(SW)}, 8
    s_add_u32 s32, s32, s33
    v_add_u32 v7, s32, v7
    v_xor_b32 v8, 128, v7
    s_mul_i32 s34, {sr(SW)}, 24576
    s_waitcnt lgkmcnt(0)
    """)
    srd(k, 20, 10, '0x10000000'); srd(k, 12, 4, '0x200000')
    srd(k, 16, 72, '0x1c0000'); srd(k, 24, 74, '0x1c0000'); srd(k, 80, 76, '0x1c0000')
    LA_, LB_ = 16, 24
    for i in range(4): k.e(f"buffer_load_dwordx4 {vr(LA_+4*i,4)}, v3, s[20:23], 0 offen offset:{16*i}")
    for i in range(8):
        k.e(f"""
        s_mov_b32 s35, {i*16*3584}
        s_add_u32 m0, s34, {i*1024}
        buffer_load_dwordx4 v6, s[16:19], s35 offen lds
        s_add_u32 m0, s34, {8192+i*1024}
        buffer_load_dwordx4 v6, s[24:27], s35 offen lds
        """)
    for i in range(8):
        k.e(f"""
        s_mov_b32 s35, {i*4096}
        s_add_u32 m0, s34, {16384+i*1024}
        buffer_load_dwordx4 v{7+(i&1)}, s[80:83], s35 offen lds
        """)
    k.e("s_barrier")
    XB = 48
    k.e("s_mov_b32 s78, 0xff00ff00\ns_mov_b32 s79, 0xff00ff00\ns_mov_b64 exec, s[78:79]")
    for r in range(16): k.e(f"v_mov_b32 v{XB+r}, 0x3f803f80")
    k.e("s_mov_b64 exec, -1")
    for j in range(1, 8):
        k.e(f"s_mov_b32 s{40+2*j}, 0x{0x01010101 << j:08x}\ns_mov_b32 s{41+2*j}, 0x{0x01010101 << j:08x}")
    k.e("s_waitcnt vmcnt(24)")
    k.stamp(2)
    A_, B_ = 32, 40
    def sort8(src, dst):
        cur, oth = src, dst
        for d in (4, 2, 1):
            for i in range(8):
                if i & d: continue
                k.e(f"v_max_u32 v{oth+i}, v{cur+i}, v{cur+i+d}\nv_min_u32 v{oth+i+d}, v{cur+i}, v{cur+i+d}")
            cur, oth = oth, cur
        return cur
    for i in range(8): k.e(f"v_max_u32 v{A_+i}, v{LA_+i}, v{LB_+7-i}")
    cur = sort8(A_, B_)
    for lv, dp in enumerate(('quad_perm:[1,0,3,2]', 'quad_perm:[2,3,0,1]', 'row_half_mirror', 'row_mirror')):
        oth = A_ + B_ - cur
        for i in range(8): k.e(f"v_max_u32_dpp v{oth+i}, v{cur+7-i}, v{cur+i} {dp} row_mask:0xf bank_mask:0xf")
        cur = oth
        if lv < 3: cur = sort8(cur, A_ + B_ - cur)
    for j in range(1, 8): k.e(f"v_cndmask_b32_e64 v{cur}, v{cur}, v{cur+j}, {sr(40+2*j,2)}")
    KEY = cur
    k.stamp(3)
    k.e(f"""
    v_and_b32 v10, 2047, v{KEY}
    v_sub_u32 v10, 2047, v10
    v_lshlrev_b32 v11, 3, v10
    v_lshrrev_b32 v12, 4, v0
    v_lshlrev_b32 v12, 4, v12
    v_lshl_add_u32 v12, v10, 10, v12
    s_lshl_b32 s32, {sr(SW)}, 8
    s_mov_b32 s33, {STAT}
    s_not_b64 exec, s[78:79]
    """)
    for s in range(4): k.e(f"buffer_load_dwordx4 {vr(XB+4*s,4)}, v12, s[12:15], s32 offen offset:{64*s}")
    k.e(f"""
    s_mov_b64 exec, -1
    buffer_load_dwordx2 v[14:15], v11, s[20:23], s33 offen
    v_ashrrev_i32 v11, 31, v{KEY}
    v_not_b32 v11, v11
    v_or_b32 v11, 0x80000000, v11
    v_xor_b32 v11, v11, v{KEY}
    v_cvt_pk_bf16_f32 v11, v11, v11
    v_and_b32 v11, 0xffff0000, v11
    v_mul_f32 v11, {f32(-1.4426950408889634)}, v11
    v_exp_f32 v11, v11
    s_add_u32 s32, s2, {sr(SW)}
    v_add_f32 v11, 1.0, v11
    v_rcp_f32 v11, v11
    v_lshlrev_b32 v13, 3, v0
    v_cvt_pk_bf16_f32 v11, v11, v11
    v_and_b32 v11, 0xffff0000, v11
    s_cmp_lg_u32 s32, 0
    s_cbranch_scc1 {name}_nosel
    s_mov_b64 exec, 0xff
    s_mov_b32 s33, {SEL}
    buffer_store_dwordx2 v[10:11], v13, s[20:23], s33 offen
    s_mov_b64 exec, -1
    """)
    k.label(f"{name}_nosel")
    k.e(f"""
    v_lshrrev_b32 v16, 4, v0
    v_bfe_u32 v17, v0, 2, 2
    v_and_b32 v18, 3, v0
    v_lshl_add_u32 v19, v16, 3, v17
    v_lshlrev_b32 v19, 6, v19
    v_lshl_add_u32 v19, v18, 3, v19
    v_and_b32 v20, 1, v16
    v_lshl_add_u32 v19, v20, 5, v19
    v_add_u32 v19, s34, v19
    v_xor_b32 v20, 32, v19
    v_lshl_add_u32 v21, v16, 2, v17
    v_and_b32 v22, 7, v21
    v_lshlrev_b32 v21, 8, v21
    v_lshl_add_u32 v21, v22, 5, v21
    v_lshl_add_u32 v21, v18, 3, v21
    v_add_u32 v21, s34, v21
    v_add_u32 v21, 16384, v21
    s_waitcnt vmcnt(13)
    """)
    AF, ACC = 64, 128
    n = 0
    for s in range(4):
        for mat in range(2):
            for hf in range(2):
                d = AF + 4 * (s * 4 + mat * 2 + hf); off = mat * 8192 + s * 2048
                k.e(f"ds_read_b64_tr_b16 {vr(d,2)}, v{19+hf} offset:{off}\nds_read_b64_tr_b16 {vr(d+2,2)}, v{19+hf} offset:{off+256}")
        k.e("s_waitcnt lgkmcnt(0)")
    k.e("s_waitcnt vmcnt(0)")
    k.stamp(4)
    for s in range(4):
        for q in range(4):
            k.e(f"v_mfma_f32_16x16x32_bf16 {vr(ACC+4*q,4)}, {vr(AF+4*(s*4+q),4)}, {vr(XB+4*s,4)}, {'0' if s == 0 else vr(ACC+4*q,4)}")
    for T in range(8):
        d = AF + 4 * T
        k.e(f"v_xor_b32 v22, {T*32}, v21\nds_read_b64_tr_b16 {vr(d,2)}, v22\nds_read_b64_tr_b16 {vr(d+2,2)}, v22 offset:4096")
        if T == 3: k.e("s_waitcnt lgkmcnt(0)")
    k.e(f"""
    v_lshlrev_b32 v16, 4, v0
    v_add_u32 v16, {FRED}, v16
    s_lshl_b32 s32, {sr(SW)}, 12
    v_add_u32 v17, s32, v16
    s_waitcnt lgkmcnt(0)
    """)
    for q in range(4): k.e(f"ds_write_b128 v17, {vr(ACC+4*q,4)} offset:{1024*q}")
    k.e(f"""
    v_mov_b32 v5, 1
    s_waitcnt lgkmcnt(0)
    ds_add_u32 v4, v5
    """)
    k.label(f"{name}_spin")
    k.e(f"""
    ds_read_b32 v5, v4
    s_waitcnt lgkmcnt(0)
    v_readfirstlane_b32 s32, v5
    s_cmp_lt_u32 s32, 256
    s_cbranch_scc1 {name}_spin
    """)
    RD = 144
    k.stamp(5)
    for w in range(4):
        for q in range(4): k.e(f"ds_read_b128 {vr(RD+16*w+4*q,4)}, v16 offset:{4096*w+1024*q}")
        if w == 1: k.e("s_waitcnt lgkmcnt(0)")
    for r in range(16): k.e(f"v_add_f32 v{RD+r}, v{RD+r}, v{RD+16+r}")
    k.e("s_waitcnt lgkmcnt(0)")
    for r in range(16): k.e(f"v_add_f32 v{RD+32+r}, v{RD+32+r}, v{RD+48+r}")
    for r in range(16): k.e(f"v_add_f32 v{RD+r}, v{RD+r}, v{RD+32+r}")
    k.e(f"v_mul_f32 v12, {f32(-1.4426950408889634)}, v15\nv_mul_f32 v13, v15, v15")
    for r in range(16): k.e(f"v_fmac_f32_dpp v{RD+r}, v{RD+r}, v14 row_ror:8 row_mask:0xf bank_mask:0xf")
    E = RD + 16
    for r in range(8): k.e(f"v_mul_f32 v{E+r}, v12, v{RD+r}")
    for r in range(8): k.e(f"v_exp_f32 v{E+r}, v{E+r}")
    for r in range(8): k.e(f"v_mul_f32 v{RD+r}, v{RD+r}, v{RD+8+r}")
    for r in range(8): k.e(f"v_add_f32 v{E+r}, 1.0, v{E+r}")
    for r in range(8): k.e(f"v_rcp_f32 v{E+r}, v{E+r}")
    for r in range(8): k.e(f"v_mul_f32 v{RD+r}, v{RD+r}, v13")
    for r in range(8): k.e(f"v_mul_f32 v{RD+r}, v{RD+r}, v{E+r}")
    for i in range(4): k.e(f"v_cvt_pk_bf16_f32 v{XB+i}, v{RD+2*i}, v{RD+2*i+1}")
    for T in range(8):
        k.e(f"v_mfma_f32_16x16x32_bf16 {vr(RD+16+4*T,4)}, {vr(AF+4*T,4)}, {vr(XB,4)}, 0")
    k.e(f"""
    v_lshrrev_b32 v16, 4, v0
    v_lshlrev_b32 v16, 4, v16
    v_lshl_add_u32 v16, v2, 11, v16
    s_lshl_b32 s32, s2, 14
    s_lshl_b32 s33, {sr(SW)}, 9
    s_add_u32 s32, s32, s33
    s_add_u32 s32, s32, {YP}
    s_not_b64 exec, s[78:79]
    """)
    for T in range(8):
        k.e(f"buffer_store_dwordx4 {vr(RD+16+4*T,4)}, v16, s[20:23], s32 offen offset:{64*T}")
    k.e(f"s_add_u32 {sr(SW)}, {sr(SW)}, 4")
    k.stamp(6); k.stamp(7, True); k.stamp_flush(TS2, SW)
    k.label(f"{name}_end")
    k.e("s_endpgm")
    return kd(name, 232)
```

```python
from asmlib import *
from k1 import *

WO, RED, YL = 0, 65536, 81920
K3_LDS = 90112
LOG2E = 1.4426950408889634

def gen_k3(k, name):
    k.raw(f".p2align 8\n.globl {name}\n.type {name},@function\n{name}:")
    SC, SRB, SW, SRH, SKH = 28, 29, 31, 32, 33
    k.e(f"""
    s_cmp_ge_u32 s2, 256
    s_cbranch_scc1 {name}_end
    """)
    k.stamp(0, True); k.stamp(1)
    k.e(f"""
    s_load_dwordx2 s[10:11], s[0:1], 80
    s_load_dwordx2 s[4:5], s[0:1], 0
    s_load_dwordx2 s[6:7], s[0:1], 16
    s_load_dwordx2 s[8:9], s[0:1], 64
    v_lshrrev_b32 v1, 6, v0
    v_and_b32 v0, 63, v0
    """)
    wg_map(k, 2, SC, SRB, 34, 35)
    OB, XR_, G, ACC, AF = 16, 80, 88, 104, 136
    k.e(f"""
    v_readfirstlane_b32 {sr(SW)}, v1
    s_and_b32 {sr(SRH)}, {sr(SW)}, 1
    s_lshr_b32 {sr(SKH)}, {sr(SW)}, 1
    v_lshlrev_b32 v1, 4, v0
    s_lshl_b32 s34, {sr(SRB)}, 16
    s_lshl_b32 s35, {sr(SRH)}, 15
    s_add_u32 s34, s34, s35
    s_lshl_b32 s35, {sr(SKH)}, 14
    s_add_u32 s34, s34, s35
    s_add_u32 s34, s34, {OF}
    v_lshrrev_b32 v2, 3, v0
    v_and_b32 v3, 7, v0
    v_bfe_u32 v4, v0, 4, 1
    v_lshlrev_b32 v4, 1, v4
    v_xor_b32 v3, v3, v4
    v_lshlrev_b32 v3, 4, v3
    v_lshl_add_u32 v2, v2, 10, v3
    s_lshl_b32 s35, {sr(SC)}, 7
    s_lshl_b32 s36, {sr(SKH)}, 18
    s_add_u32 s35, s35, s36
    s_lshl_b32 s36, {sr(SRH)}, 13
    s_add_u32 s35, s35, s36
    v_add_u32 v2, s35, v2
    s_lshl_b32 s36, {sr(SKH)}, 15
    s_lshl_b32 s37, {sr(SRH)}, 10
    s_add_u32 s36, s36, s37
    v_and_b32 v4, 31, v0
    s_lshl_b32 s37, {sr(SRB)}, 6
    s_lshl_b32 s38, {sr(SRH)}, 5
    s_add_u32 s37, s37, s38
    v_add_u32 v4, s37, v4
    v_lshrrev_b32 v5, 5, v0
    v_lshlrev_b32 v6, 6, v5
    v_lshl_add_u32 v6, v4, 10, v6
    s_lshl_b32 s37, {sr(SC)}, 7
    s_lshl_b32 s38, {sr(SKH)}, 5
    s_add_u32 s37, s37, s38
    v_add_u32 v6, s37, v6
    v_lshlrev_b32 v7, 3, v4
    s_mov_b32 s39, {STAT}
    s_waitcnt lgkmcnt(0)
    s_add_u32 s40, s10, {SEL}
    s_addc_u32 s41, s11, 0
    s_load_dwordx16 s[48:63], s[40:41], 0
    """)
    srd(k, 20, 10, '0x10000000'); srd(k, 12, 4, '0x200000'); srd(k, 16, 6, '0x80000'); srd(k, 24, 8, '0x200000')
    for hd in range(16):
        k.e(f"""
        s_mov_b32 s42, {hd*16384}
        s_add_u32 m0, s36, {hd*2048}
        buffer_load_dwordx4 v2, s[16:19], s42 offen lds
        s_add_u32 s43, s34, {(hd//4)*4096}
        buffer_load_dwordx4 {vr(OB+4*hd,4)}, v1, s[20:23], s43 offen offset:{(hd%4)*1024}
        """)
        if hd == 3:
            k.e(f"""
            buffer_load_dwordx4 {vr(XR_,4)}, v6, s[12:15], 0 offen
            buffer_load_dwordx4 {vr(XR_+4,4)}, v6, s[12:15], 0 offen offset:16
            buffer_load_dwordx2 v[8:9], v7, s[20:23], s39 offen
            """)
    k.e(f"""
    v_bfe_u32 v10, v0, 2, 2
    v_lshl_add_u32 v11, v5, 2, v10
    v_lshlrev_b32 v11, 7, v11
    v_and_b32 v12, 1, v0
    v_lshl_add_u32 v11, v12, 6, v11
    v_lshrrev_b32 v10, 1, v10
    v_lshl_add_u32 v11, v10, 5, v11
    v_bfe_u32 v12, v0, 4, 1
    v_lshl_add_u32 v11, v12, 4, v11
    v_bfe_u32 v12, v0, 1, 1
    v_lshl_add_u32 v11, v12, 3, v11
    s_lshl_b32 s42, {sr(SKH)}, 15
    v_add_u32 v10, s42, v11
    v_xor_b32 v11, 32, v10
    """)
    for r in range(16): k.e(f"v_mov_b32 v{G+r}, 0")
    k.e(f"s_waitcnt lgkmcnt(0)\ns_mov_b32 s44, 0")
    for j in range(8):
        k.e(f"""
        s_lshr_b32 s42, s{48+2*j}, 6
        s_cmp_eq_u32 s42, {sr(SRB)}
        s_cselect_b32 s42, {1<<j}, 0
        s_or_b32 s44, s44, s42
        """)
    k.e(f"s_cmp_eq_u32 s44, 0\ns_cbranch_scc1 {name}_nosel")
    YT = 136
    k.e(f"""
    v_lshlrev_b32 v12, 2, v0
    s_mul_i32 s45, {sr(SW)}, {14*16384}
    s_lshl_b32 s42, {sr(SC)}, 8
    s_add_u32 s45, s45, s42
    s_add_u32 s45, s45, {YP}
    s_lshl_b32 s46, {sr(SW)}, 8
    s_add_u32 s46, s46, {YL}
    v_add_u32 v13, s46, v12
    """)
    for j in range(8):
        L = f"{name}_ys{j}"
        k.e(f"s_bitcmp0_b32 s44, {j}\ns_cbranch_scc1 {L}\ns_add_u32 s42, s45, {j*2048}")
        for p in range(14):
            k.e(f"buffer_load_dword v{YT+p}, v12, s[20:23], s42 offen\ns_add_u32 s42, s42, 16384")
        k.e("s_waitcnt vmcnt(0)")
        for p in range(1, 14): k.e(f"v_add_f32 v{YT}, v{YT}, v{YT+p}")
        k.e(f"ds_write_b32 v13, v{YT} offset:{j*1024}")
        k.label(L)
    k.e(f"""
    s_waitcnt lgkmcnt(0)
    s_barrier
    v_lshlrev_b32 v12, 7, v5
    s_lshl_b32 s42, {sr(SKH)}, 6
    s_add_u32 s42, s42, {YL}
    v_add_u32 v12, s42, v12
    """)
    for j in range(8):
        L = f"{name}_yt{j}"
        k.e(f"s_bitcmp0_b32 s44, {j}\ns_cbranch_scc1 {L}")
        for w in range(4):
            for i in range(4): k.e(f"ds_read_b128 {vr(YT+16*(w&1)+4*i,4)}, v12 offset:{j*1024+w*256+16*i}")
            k.e("s_waitcnt lgkmcnt(0)")
            if w == 0:
                for r in range(16): k.e(f"v_mov_b32 v{YT+32+r}, v{YT+r}")
            else:
                for r in range(16): k.e(f"v_add_f32 v{YT+32+r}, v{YT+32+r}, v{YT+16*(w&1)+r}")
        k.e(f"v_cmp_eq_u32 vcc, s{48+2*j}, v4")
        for r in range(16):
            k.e(f"v_mul_f32 v{YT+32+r}, s{49+2*j}, v{YT+32+r}\nv_cndmask_b32 v{G+r}, v{G+r}, v{YT+32+r}, vcc")
        k.label(L)
    k.label(f"{name}_nosel")
    k.stamp(2)
    XF = ACC
    T = 136
    k.e("s_waitcnt vmcnt(24)")
    for i in range(8):
        k.e(f"""
        v_lshlrev_b32 v{T+2*i}, 16, v{XR_+i}
        v_and_b32 v{T+2*i+1}, 0xffff0000, v{XR_+i}
        v_add_f32 v{T+2*i}, v{T+2*i}, v8
        v_add_f32 v{T+2*i+1}, v{T+2*i+1}, v8
        v_cvt_pk_bf16_f32 v{T+16+i}, v{T+2*i}, v{T+2*i+1}
        v_lshlrev_b32 v{T+2*i}, 16, v{T+16+i}
        v_and_b32 v{T+2*i+1}, 0xffff0000, v{T+16+i}
        v_mul_f32 v{T+2*i}, v{T+2*i}, v9
        v_mul_f32 v{T+2*i+1}, v{T+2*i+1}, v9
        v_cvt_pk_bf16_f32 v{T+16+i}, v{T+2*i}, v{T+2*i+1}
        v_lshlrev_b32 v{T+2*i}, 16, v{T+16+i}
        v_and_b32 v{T+2*i+1}, 0xffff0000, v{T+16+i}
        """)
    for r in range(16): k.e(f"v_add_f32 v{G+r}, v{G+r}, v{T+r}")
    for r in range(16): k.e(f"v_mul_f32 v{T+r}, {f32(-LOG2E)}, v{G+r}")
    for r in range(16): k.e(f"v_exp_f32 v{T+r}, v{T+r}")
    for r in range(16): k.e(f"v_add_f32 v{T+r}, 1.0, v{T+r}")
    for r in range(16): k.e(f"v_rcp_f32 v{T+r}, v{T+r}")
    for r in range(16): k.e(f"v_mul_f32 v{G+r}, v{G+r}, v{T+r}")
    k.stamp(3)
    def reads(hd):
        b = hd & 1
        for Tt in range(2):
            d = AF + 8 * b + 4 * Tt
            k.e(f"ds_read_b64_tr_b16 {vr(d,2)}, v{10+Tt} offset:{hd*2048}\nds_read_b64_tr_b16 {vr(d+2,2)}, v{10+Tt} offset:{hd*2048+1024}")
    def mf(hd):
        b = hd & 1
        for Tt in range(2):
            k.e(f"v_mfma_f32_32x32x16_bf16 {vr(ACC+16*Tt,16)}, {vr(AF+8*b+4*Tt,4)}, {vr(OB+4*hd,4)}, {'0' if hd == 0 else vr(ACC+16*Tt,16)}")
    for st in range(4):
        k.e(f"s_waitcnt vmcnt({24-8*st})\ns_barrier")
        reads(4 * st); reads(4 * st + 1)
        k.e("s_waitcnt lgkmcnt(4)"); mf(4 * st); reads(4 * st + 2)
        k.e("s_waitcnt lgkmcnt(4)"); mf(4 * st + 1); reads(4 * st + 3)
        k.e("s_waitcnt lgkmcnt(4)"); mf(4 * st + 2)
        k.e("s_waitcnt lgkmcnt(0)"); mf(4 * st + 3)
    k.stamp(4)
    k.e(f"""
    s_lshl_b32 s42, {sr(SW)}, 12
    s_add_u32 s42, s42, {RED}
    v_add_u32 v12, s42, v1
    s_xor_b32 s42, s42, 8192
    v_add_u32 v13, s42, v1
    s_cmp_eq_u32 {sr(SKH)}, 0
    s_cbranch_scc1 {name}_k0
    """)
    for i in range(4): k.e(f"ds_write_b128 v12, {vr(ACC+4*i,4)} offset:{1024*i}")
    for r in range(16): k.e(f"v_mov_b32 v{ACC+r}, v{ACC+16+r}")
    k.e(f"s_branch {name}_k1")
    k.label(f"{name}_k0")
    for i in range(4): k.e(f"ds_write_b128 v12, {vr(ACC+16+4*i,4)} offset:{1024*i}")
    k.label(f"{name}_k1")
    k.e("s_waitcnt lgkmcnt(0)\ns_barrier")
    for i in range(4): k.e(f"ds_read_b128 {vr(ACC+16+4*i,4)}, v13 offset:{1024*i}")
    for i in range(8):
        k.e(f"v_lshlrev_b32 v{T+2*i}, 16, v{XR_+i}\nv_and_b32 v{T+2*i+1}, 0xffff0000, v{XR_+i}")
    k.e("s_waitcnt lgkmcnt(0)")
    k.stamp(5)
    for r in range(16): k.e(f"v_add_f32 v{ACC+r}, v{ACC+r}, v{ACC+16+r}")
    for r in range(16): k.e(f"v_fmac_f32 v{T+r}, v{ACC+r}, v{G+r}")
    for i in range(8): k.e(f"v_cvt_pk_bf16_f32 v{ACC+i}, v{T+2*i}, v{T+2*i+1}")
    k.e(f"""
    buffer_store_dwordx4 {vr(ACC,4)}, v6, s[24:27], 0 offen
    buffer_store_dwordx4 {vr(ACC+4,4)}, v6, s[24:27], 0 offen offset:16
    """)
    k.stamp(6); k.stamp(7, True); k.stamp_flush(TS3, SW)
    k.label(f"{name}_end")
    k.e("s_endpgm")
    return kd(name, 192)
```

```python
import sys
sys.path.insert(0, 'gen')
from asmlib import *
import k1
P = 'recurrent_scan__sliding_block__moe_arch_mod__prompt'
def build(which=('k1','k2','k3'), prof=False):
    k = K()
    hdr = open(f'cdna_kernels/{P}.s.ref').read().split('; Override launch')[0]
    launches = []; kds = []
    body = K(); body.prof = prof
    body.raw('.amdgcn_target "amdgcn-amd-amdhsa--gfx950"\n.text')
    if 'k1' in which:
        launches.append(f'; @launch kernel=qkv_kernel grid=(256,1,1) block=(512,1,1) lds={k1.K1_LDS}')
        kds.append(k1.gen_k1(body, 'qkv_kernel'))
    if 'k2' in which:
        import k2
        launches.append(f'; @launch kernel=attn_kernel grid=(256,1,1) block=(512,1,1) lds={k2.K2_LDS}')
        kds.append(k2.gen_k2(body, 'attn_kernel'))
    if 'k3' in which:
        import k3
        launches.append(f'; @launch kernel=oproj_kernel grid=(256,1,1) block=(256,1,1) lds={k3.K3_LDS}')
        kds.append(k3.gen_k3(body, 'oproj_kernel'))
    return hdr + '\n'.join(launches) + '\n' + body.text() + '.section .rodata,"a"\n' + ''.join(kds)
if __name__ == '__main__':
    out = sys.argv[1]; which = sys.argv[2].split(',') if len(sys.argv) > 2 else ('k1','k2','k3')
    open(out, 'w').write(build(which, len(sys.argv) > 3))
```

```python
import re

REG_RE = re.compile(r'^(-|\|)?([vsa])(\d+)\|?$')
RNG_RE = re.compile(r'^(-|\|)?([vsa])\[(\d+):(\d+)\]\|?$')
TRANS = ('v_exp_', 'v_log_', 'v_rcp_', 'v_rsq_', 'v_sqrt_', 'v_sin_', 'v_cos_')
DPPK = ('quad_perm', 'row_shl', 'row_shr', 'row_ror', 'wave_', 'row_mirror', 'row_half_mirror', 'row_bcast', 'row_newbcast')

def regs_of(tok):
    tok = tok.strip()
    if tok.startswith('neg(') or tok.startswith('abs('):
        tok = tok[4:-1]
    m = REG_RE.match(tok)
    if m: return {(m.group(2), int(m.group(3)))}
    m = RNG_RE.match(tok)
    if m: return {(m.group(2), i) for i in range(int(m.group(3)), int(m.group(4)) + 1)}
    if tok == 'vcc': return {('s', 106), ('s', 107)}
    if tok == 'vcc_lo': return {('s', 106)}
    if tok == 'vcc_hi': return {('s', 107)}
    if tok == 'exec': return {('x', 0), ('x', 1)}
    if tok == 'exec_lo': return {('x', 0)}
    if tok == 'exec_hi': return {('x', 1)}
    if tok == 'm0': return {('m', 0)}
    return set()

def split_ops(s):
    out, cur, d = [], '', 0
    for ch in s:
        if ch in '[(': d += 1
        if ch in '])': d -= 1
        if ch == ',' and d == 0: out.append(cur); cur = ''
        else: cur += ch
    if cur.strip(): out.append(cur)
    return [o.strip() for o in out]

class I:
    pass

def parse(text):
    t = text.split(';')[0].strip()
    i = I(); i.text = text
    mn, _, rest = t.partition(' ')
    i.mn = mn
    ops = split_ops(rest)
    mods = ''
    if ops:
        last = ops[-1].split(None, 1)
        if last:
            ops[-1] = last[0]
            mods = last[1] if len(last) > 1 else ''
    i.ops, i.mods = ops, mods
    R = [regs_of(o) for o in ops]
    U = lambda xs: set().union(*xs) if xs else set()
    i.w, i.r = set(), set()
    i.kind = 'other'; i.passes = 0; i.A = i.B = i.C = set(); i.ws = 1
    i.dpp = any(k in mods for k in DPPK)
    i.trans = mn.startswith(TRANS)
    i.wide_store = set()
    if mn == 's_nop':
        i.ws = int(ops[0], 0) + 1; i.kind = 'nop'
    elif mn.startswith('v_mfma'):
        i.kind = 'mfma'; i.w = R[0]; i.A, i.B, i.C = R[1], R[2], R[3]; i.r = U(R[1:])
        i.passes = 8 if '32x32' in mn else 4
    elif mn.startswith('v_'):
        i.kind = 'valu'
        if mn.startswith('v_cmpx'):
            i.w = {('x', 0), ('x', 1)} | R[0]; i.r = U(R[1:])
        elif mn.startswith(('v_add_co', 'v_sub_co', 'v_subrev_co', 'v_addc_co', 'v_subb_co', 'v_subbrev_co', 'v_div_scale', 'v_mad_u64', 'v_mad_i64')):
            i.w = R[0] | R[1]; i.r = U(R[2:])
        elif mn.startswith(('v_permlane16_swap', 'v_permlane32_swap', 'v_swap')):
            i.w = R[0] | R[1]; i.r = R[0] | R[1]
        elif mn.startswith(('v_fmac', 'v_dot2c', 'v_pk_fmac', 'v_mac', 'v_writelane')):
            i.w = R[0]; i.r = U(R)
        elif mn == 'v_nop':
            pass
        else:
            i.w = R[0]; i.r = U(R[1:])
            if i.dpp: i.r |= R[0]
    elif mn.startswith('ds_'):
        i.kind = 'ds'
        if mn.startswith(('ds_read', 'ds_bpermute', 'ds_permute', 'ds_swizzle')) or '_rtn' in mn:
            i.w = R[0]; i.r = U(R[1:])
        else: i.r = U(R)
    elif mn.startswith(('buffer_', 'global_')):
        i.kind = 'vmem'
        lds = ' lds' in (' ' + mods) or '_lds_' in mn
        i.lds = lds
        if lds: i.r = U(R) | {('m', 0)}
        elif '_load' in mn: i.w = R[0]; i.r = U(R[1:])
        elif 'atomic' in mn and ('sc0' in mods):
            i.w = R[0]; i.r = U(R)
        else:
            i.r = U(R)
            if mn.endswith(('x3', 'x4')):
                i.wide_store = R[0] if mn.startswith('buffer_') else R[1]
    elif mn.startswith('s_'):
        i.kind = 'salu'
        if mn.startswith(('s_cmp', 's_waitcnt', 's_barrier', 's_branch', 's_cbranch', 's_endpgm', 's_setprio', 's_sleep', 's_bitcmp', 's_setpc', 's_sethalt')):
            i.r = U(R)
        else:
            i.w = R[0] if R else set(); i.r = U(R[1:])
            if 'saveexec' in mn: i.w |= {('x', 0), ('x', 1)}
            if mn.startswith(('s_load', 's_buffer_load')): i.kind = 'smem'
    return i

def need(p, c):
    n = 0
    vw = {r for r in p.w if r[0] in 'va'}
    sw = {r for r in p.w if r[0] == 's'}
    xw = {r for r in p.w if r[0] == 'x'}
    if c is None:
        if p.kind == 'mfma': n = max(n, p.passes + 4)
        if p.kind == 'valu':
            if vw: n = max(n, 3 if p.mn.startswith('v_dot') else 2)
            if sw or xw: n = max(n, 5)
        if p.wide_store: n = max(n, 2)
        if p.kind == 'salu' and ('m', 0) in p.w: n = max(n, 1)
        return n
    if p.kind == 'mfma':
        if c.kind == 'mfma':
            if p.w & (c.A | c.B): n = max(n, p.passes + 4)
            if p.w & c.C:
                if not (p.w == c.C and p.passes == c.passes): n = max(n, p.passes + 2)
            elif p.w & c.w: n = max(n, p.passes + 4)
        elif c.kind in ('valu', 'vmem', 'ds'):
            if p.w & (c.r | c.w): n = max(n, p.passes + 4)
            if p.C & c.w: n = max(n, p.passes - 1)
    if p.kind == 'valu':
        if c.kind == 'mfma':
            if vw & c.r: n = max(n, 2)
            if xw: n = max(n, 4)
        if c.kind == 'vmem' and sw & c.r: n = max(n, 5)
        if c.kind == 'valu':
            if sw & c.r:
                n = max(n, 4 if c.mn.startswith(('v_readlane', 'v_writelane')) else 2)
            if vw & c.r:
                if c.dpp or c.mn.startswith('v_permlane'): n = max(n, 2)
                if c.mn.startswith(('v_readlane', 'v_readfirstlane')): n = max(n, 1)
                if p.trans and not c.trans: n = max(n, 1)
                if 'op_sel' in p.mods or 'sdwa' in p.mn: n = max(n, 1)
            if p.mn.startswith('v_dot') and (vw & (c.r | c.w)):
                if not (c.mn == p.mn and c.ops and regs_of(c.ops[-1]) == vw and not (vw & (regs_of(c.ops[1]) | regs_of(c.ops[2])))):
                    n = max(n, 3)
            if xw:
                if c.dpp: n = max(n, 5)
                if c.mn.startswith(('v_readlane', 'v_readfirstlane', 'v_writelane', 'v_permlane')): n = max(n, 4)
                if xw & c.r: n = max(n, 2)
        if p.mn.startswith('v_dot') and c.kind in ('mfma', 'vmem', 'ds') and (vw & c.r): n = max(n, 3)
        if p.trans and c.kind in ('vmem', 'ds') and (vw & c.r): n = max(n, 1)
    if p.wide_store and (p.wide_store & c.w): n = max(n, 2)
    if p.kind == 'salu' and ('m', 0) in p.w and ('m', 0) in c.r and c.kind in ('vmem', 'ds'): n = max(n, 1)
    return n

class K:
    def __init__(self):
        self.lines = []
        self.hist = []
        self.nops = 0
    def raw(self, s): self.lines.append(s)
    def c(self, s): self.lines.append('    ; ' + s)
    def _pad(self, c):
        dist = 0; req = 0
        for p in reversed(self.hist):
            req = max(req, need(p, c) - dist)
            dist += p.ws
            if dist > 14: break
        while req > 0:
            n = min(req, 8)
            self.lines.append('    s_nop %d' % (n - 1)); self.hist.append(parse('s_nop %d' % (n - 1)))
            self.nops += 1
            req -= n
    def e(self, text):
        for t in text.strip().split('\n'):
            t = t.strip()
            if not t or t.startswith(';'): continue
            i = parse(t)
            if i.mn.startswith(('s_branch', 's_cbranch', 's_setpc')): self._pad(None)
            else: self._pad(i)
            self.lines.append('    ' + t); self.hist.append(i)
            if len(self.hist) > 40: self.hist = self.hist[-20:]
    def label(self, name):
        self._pad(None)
        self.lines.append(name + ':')
    prof = False
    SB0 = 84
    def stamp(self, i, real=False):
        if self.prof: self.e(f"{'s_memrealtime' if real else 's_memtime'} s[{self.SB0+2*i}:{self.SB0+1+2*i}]")
    def stamp_flush12(self, base, swave, srd):
        if not self.prof: return
        self.e("s_mov_b64 exec, 1\ns_waitcnt lgkmcnt(0)")
        for i in range(12): self.e(f"v_mov_b32 v{8+i}, s{self.SB0+2*i}")
        self.e(f"""s_lshl_b32 s100, s2, 3
        s_add_u32 s100, s100, s{swave}
        s_lshl_b32 s100, s100, 6
        s_add_u32 s100, s100, {base}
        v_mov_b32 v7, 0
        buffer_store_dwordx4 v[8:11], v7, s[{srd}:{srd+3}], s100 offen
        buffer_store_dwordx4 v[12:15], v7, s[{srd}:{srd+3}], s100 offen offset:16
        buffer_store_dwordx4 v[16:19], v7, s[{srd}:{srd+3}], s100 offen offset:32""")
    def stamp_flush(self, base, swave, wsp=10):
        if not self.prof: return
        self.e("s_mov_b64 exec, 1\ns_waitcnt lgkmcnt(0)")
        for i in range(8): self.e(f"v_mov_b32 v{8+i}, s{84+2*i}")
        self.e(f"""s_lshl_b32 s100, s2, 3
        s_add_u32 s100, s100, s{swave}
        s_lshl_b32 s100, s100, 5
        s_add_u32 s100, s100, {base}
        v_mov_b32 v7, 0
        buffer_store_dwordx4 v[8:11], v7, s[20:23], s100 offen
        buffer_store_dwordx4 v[12:15], v7, s[20:23], s100 offen offset:16""")
    def text(self): return '\n'.join(self.lines) + '\n'

def vr(b, n=1): return 'v%d' % b if n == 1 else 'v[%d:%d]' % (b, b + n - 1)
def sr(b, n=1): return 's%d' % b if n == 1 else 's[%d:%d]' % (b, b + n - 1)
def ar(b, n=1): return 'a%d' % b if n == 1 else 'a[%d:%d]' % (b, b + n - 1)

def kd(name, nv, accum=None, ns=102):
    nv8 = (nv + 7) // 8 * 8
    acc = accum if accum is not None else (min(nv8, 256) + 3) // 4 * 4
    return f""".p2align 6
.amdhsa_kernel {name}
  .amdhsa_next_free_vgpr {nv8}
  .amdhsa_next_free_sgpr {ns}
  .amdhsa_accum_offset {acc}
  .amdhsa_group_segment_fixed_size 0
  .amdhsa_kernarg_size 88
  .amdhsa_user_sgpr_count 2
  .amdhsa_user_sgpr_kernarg_segment_ptr 1
  .amdhsa_system_sgpr_workgroup_id_x 1
.end_amdhsa_kernel
"""


class Cnt:
    def __init__(self, k, name, cap):
        self.k, self.name, self.cap = k, name, cap; self.n = 0; self.tags = {}
    def op(self, text, tag=None):
        for t in text.strip().split('\n'):
            t = t.strip()
            if not t: continue
            self.k.e(t)
            mn = t.split()[0]
            if (self.name == 'lgkmcnt' and mn.startswith('ds_')) or (self.name == 'vmcnt' and mn.startswith(('buffer_', 'global_'))):
                self.n += 1
        if tag is not None: self.tags[tag] = self.n
    def wait(self, tag):
        n = self.n - self.tags[tag]
        if n >= getattr(self, 'known', 1 << 30) - 0 and False: return
        self.k.e(f"s_waitcnt {self.name}({min(n, self.cap)})")
    def all(self): self.k.e(f"s_waitcnt {self.name}(0)")
```

```python
import os, struct
from asmlib import *

XP = os.environ.get('XP', '')
KF, VF, OF = 0x000000, 0x200000, 0x400000
YP = 0x600000
FL = 0x700000
MB1 = FL
MB2 = FL + 0x8000
KEYA = FL + 0x18000
KEYB = FL + 0x1C000
SELG = FL + 0x20000
YF = FL + 0x20100
TS = 0x800000
WSZ = '0x10000000'
OOB = 0x7ff00000
QSCALE = 0.25 * 1.4426950408889634
LOG2E = 1.4426950408889634
NFFN = 56
NBIG = '0xf149f2ca'
RING = 65536
SCR = RING + 10 * 8192
CSX, CSB = SCR, SCR + 4096
SY = SCR + 8192
LD, CONS, EPO, WOL, YD, R0, R1, FT, FR, FS = 0, 16, 32, 48, 64, 80, 96, 112, 128, 144
TOP, SELL, KX = 256, 320, 384
STL = 512
STX = 2048
YL = 4096
QXB = RING + 4 * 8192
RED0, RED1 = RING, RING + 8 * 8192
LDS_BYTES = 160 * 1024
KVSLOT = [0, 2, 4, 6, 8, 0, 2, 4]
QSLOT = [6, 7, 8, 9, 0, 1, 2, 3]
PX, PW, PWO, PWR, PWG, PWU, PWD, POUT, PDBG, PWS = 4, 6, 8, 12, 14, 16, 18, 20, 22, 24
SC, SRB, SW, SEP = 26, 27, 28, 29
WS = 40
SONE = 39
SMASK = 44
VSY = 1

def f32(x): return '0x%08x' % struct.unpack('<I', struct.pack('<f', x))[0]

def srd(k, d, p, size):
    k.e(f"s_mov_b32 s{d}, s{p}\ns_mov_b32 s{d+1}, s{p+1}\ns_mov_b32 s{d+2}, {size}\ns_mov_b32 s{d+3}, 0x00020000")

def uid(k, p):
    k.uid = getattr(k, 'uid', 0) + 1
    return f"{p}_{k.uid}"

def wait_lds(k, off, n, target, vt, sleep=0, vaddr=VSY, src=30):
    L = uid(k, 'wl'); D = L + 'd'
    k.e("s_mov_b32 s3, 0x10000")
    k.label(L)
    op = {1: 'ds_read_b32', 2: 'ds_read_b64', 4: 'ds_read_b128'}[n]
    k.e(f"{op} {vr(vt,n)}, v{vaddr} offset:{off}\ns_waitcnt lgkmcnt(0)")
    if n == 2: k.e(f"v_min_u32 v{vt}, v{vt}, v{vt+1}")
    if n == 4: k.e(f"v_min_u32 v{vt}, v{vt}, v{vt+1}\nv_min3_u32 v{vt}, v{vt}, v{vt+2}, v{vt+3}")
    k.e(f"v_readfirstlane_b32 s{src}, v{vt}\ns_cmp_ge_u32 s{src}, {target}\ns_cbranch_scc1 {D}")
    if sleep: k.e(f"s_sleep {sleep}")
    k.e(f"s_sub_u32 s3, s3, 1\ns_cbranch_scc0 {L}")
    k.label(D)

def poll(k, vaddr, soff, vt, sleep=1, off=0):
    L = uid(k, 'pl'); D = L + 'd'
    k.e("s_mov_b32 s3, 0x8000")
    k.label(L)
    k.e(f"""buffer_load_dword v{vt}, v{vaddr}, s[{WS}:{WS+3}], {soff} offen offset:{off} sc1
    s_waitcnt vmcnt(0)
    v_cmp_ne_u32 vcc, s{SEP}, v{vt}
    s_cbranch_vccz {D}""")
    if sleep: k.e(f"s_sleep {sleep}")
    k.e(f"s_sub_u32 s3, s3, 1\ns_cbranch_scc0 {L}")
    k.label(D)

def get_epoch(k, vt, sleep=0):
    wait_lds(k, EPO, 1, 1, vt, sleep, src=SEP)

def ln_final(k, sx, sq, nm, ri, t):
    k.e(f"""
    v_mul_f32 v{nm}, {f32(1/512)}, v{sx}
    v_mul_f32 v{ri}, {f32(1/512)}, v{sq}
    v_fma_f32 v{ri}, -v{nm}, v{nm}, v{ri}
    v_max_f32 v{ri}, 0, v{ri}
    v_cvt_pk_bf16_f32 v{t}, v{nm}, v{ri}
    v_lshlrev_b32 v{nm}, 16, v{t}
    v_and_b32 v{ri}, 0xffff0000, v{t}
    v_add_f32 v{ri}, {f32(1e-5)}, v{ri}
    v_cvt_pk_bf16_f32 v{ri}, v{ri}, v{ri}
    v_lshlrev_b32 v{ri}, 16, v{ri}
    v_sqrt_f32 v{ri}, v{ri}
    v_xor_b32 v{nm}, 0x80000000, v{nm}
    v_cvt_pk_bf16_f32 v{ri}, v{ri}, v{ri}
    v_lshlrev_b32 v{t+1}, 16, v{ri}
    v_rcp_f32 v{ri}, v{t+1}
    """)

def code_prefetch(k, first_line, nlanes, sidx, shift, vtmp, vdst, stmp):
    L = uid(k, 'pf')
    k.e(f"s_getpc_b64 {sr(stmp,2)}")
    k.raw(f"{L}:")
    k.e(f"""
    s_sub_u32 {sr(stmp)}, {sr(stmp)}, {L}-text_start
    s_subb_u32 {sr(stmp+1)}, {sr(stmp+1)}, 0
    s_lshl_b32 {sr(stmp+2)}, {sr(sidx)}, {shift}
    v_and_b32 v{vtmp}, {nlanes-1}, v0
    v_add_u32 v{vtmp}, {sr(stmp+2)}, v{vtmp}
    v_lshlrev_b32 v{vtmp}, 7, v{vtmp}
    v_add_u32 v{vtmp}, {first_line*128}, v{vtmp}
    v_min_u32 v{vtmp}, text_end-text_start-4, v{vtmp}
    global_load_dword v{vdst}, v{vtmp}, {sr(stmp,2)}
    """)

def prologue(k, name):
    k.raw(f".p2align 8\n.globl {name}\n.type {name},@function\n{name}:")
    k.e(f"""
    s_load_dwordx16 s[4:19], s[0:1], 0
    s_load_dwordx4 s[20:23], s[0:1], 64
    s_load_dwordx2 s[24:25], s[0:1], 80
    s_cmp_ge_u32 s2, 256
    s_cbranch_scc1 {name}_end
    """)
    k.stamp(0, True); k.stamp(1)
    k.e(f"""
    v_lshrrev_b32 v2, 6, v0
    v_and_b32 v0, 63, v0
    s_lshr_b32 s30, s2, 3
    v_readfirstlane_b32 s{SW}, v2
    s_and_b32 s{SC}, s2, 1
    s_lshl_b32 s{SC}, s{SC}, 2
    s_and_b32 s31, s30, 3
    s_add_u32 s{SC}, s{SC}, s31
    s_bfe_u32 s{SRB}, s2, 0x20001
    s_lshl_b32 s{SRB}, s{SRB}, 3
    s_lshr_b32 s31, s30, 2
    s_add_u32 s{SRB}, s{SRB}, s31
    v_mov_b32 v{VSY}, {SY}
    s_mov_b32 s{WS+2}, {WSZ}
    s_mov_b32 s{WS+3}, 0x00020000
    s_cmp_lt_u32 s{SW}, 4
    s_cbranch_scc1 {name}_cw
    s_cmp_ge_u32 s{SW}, 6
    s_cbranch_scc1 {name}_kf
    """)

def loader(k, name):
    VX0, VX1, VW = 2, 3, 4
    SLW = 32; SX_, SW_ = 44, 48
    k.e(f"""
    s_sub_u32 s{SLW}, s{SW}, 4
    v_lshrrev_b32 v10, 3, v0
    v_and_b32 v11, 7, v0
    v_lshrrev_b32 v12, 1, v10
    v_xor_b32 v13, v11, v12
    v_lshlrev_b32 v13, 4, v13
    v_lshl_add_u32 v{VX0}, v10, 10, v13
    s_lshl_b32 s33, s{SRB}, 16
    s_lshl_b32 s34, s{SLW}, 15
    s_add_u32 s33, s33, s34
    v_add_u32 v{VX0}, s33, v{VX0}
    v_xor_b32 v{VX1}, 64, v{VX0}
    v_add_u32 v{VX1}, 8192, v{VX1}
    v_and_b32 v12, 1, v12
    v_lshlrev_b32 v12, 2, v12
    v_xor_b32 v13, v11, v12
    v_lshlrev_b32 v13, 4, v13
    v_mul_u32_u24 v{VW}, 3072, v10
    v_add_u32 v{VW}, v{VW}, v13
    s_mul_i32 s33, s{SLW}, 98304
    s_lshl_b32 s34, s{SC}, 7
    s_add_u32 s33, s33, s34
    v_add_u32 v{VW}, s33, v{VW}
    s_lshl_b32 s35, s{SLW}, 12
    s_lshl_b32 s36, s{SLW}, 13
    s_mov_b32 s{SX_+2}, 0x200000
    s_mov_b32 s{SX_+3}, 0x00020000
    s_mov_b32 s{SW_+2}, 0x180000
    s_mov_b32 s{SW_+3}, 0x00020000
    s_lshl_b32 s37, s{SLW}, 2
    v_add_u32 v5, s37, v{VSY}
    s_waitcnt lgkmcnt(0)
    s_mov_b32 s{SX_}, s{PX}
    s_mov_b32 s{SX_+1}, s{PX+1}
    s_mov_b32 s{SW_}, s{PW}
    s_mov_b32 s{SW_+1}, s{PW+1}
    """)
    k.stamp(2)
    vm = Cnt(k, 'vmcnt', 63)
    def dx(i):
        for q in range(4):
            if q % 2 == 0: k.e(f"s_mov_b32 s38, {i*128 + (q//2)*16384}")
            vm.op(f"s_add_u32 m0, s35, {i*8192+q*1024}\nbuffer_load_dwordx4 v{VX0+(q&1)}, s[{SX_}:{SX_+3}], s38 offen lds")
    def dkv(i):
        for q in range(4):
            vm.op(f"""s_add_u32 m0, s36, {RING+KVSLOT[i]*8192+q*2048-1024}
            s_mov_b32 s39, {i*196608+q*24576}
            buffer_load_dwordx4 v{VW}, s[{SW_}:{SW_+3}], s39 offen offset:1024 lds
            buffer_load_dwordx4 v{VW}, s[{SW_}:{SW_+3}], s39 offen offset:2048 lds""")
    def dq(i):
        for q in range(4):
            vm.op(f"""s_add_u32 m0, s35, {RING+QSLOT[i]*8192+q*1024}
            s_mov_b32 s39, {i*196608+q*24576}
            buffer_load_dwordx4 v{VW}, s[{SW_}:{SW_+3}], s39 offen lds""")
    def group(g):
        need = {5: 1, 6: 2, 7: 3, 8: 4, 9: 5, 10: 6, 11: 7}.get(g)
        if need: wait_lds(k, CONS, 4, need, 12)
        if g < 8: dx(g); dkv(g)
        else: dq(2 * (g - 8)); dq(2 * (g - 8) + 1)
        vm.tags[g] = vm.n
    group(0)
    k.e("s_barrier")
    for g in range(12):
        if g + 1 < 12: group(g + 1)
        vm.wait(g)
        k.e(f"v_mov_b32 v6, {g+1}\nds_write_b32 v5, v6 offset:{LD}")
        if g == 0: k.stamp(3)
        if g == 7: k.stamp(4)
    k.stamp(5)
    k.e(f"s_mov_b32 s{WS}, s{PWS}\ns_mov_b32 s{WS+1}, s{PWS+1}")
    get_epoch(k, 12, 1)
    k.e(f"s_branch {name}_sv")

AQ, AK, AV, AC, BP, ST, XF, WF, EP, AD = 16, 32, 48, 64, 68, 76, 80, 96, 128, 160
XA, WA, E = AD, AD + 4, AD + 8
Q, KR, C, O0, O1, SB, M, MX, T, V = 8, 16, 56, 72, 88, 104, 152, 160, 164, 176
SRH, SHP = 32, 33

def cwave_qkv(k, name):
    k.label(f"{name}_cw")
    k.e(f"""
    v_lshrrev_b32 v10, 3, v0
    v_and_b32 v11, 7, v0
    s_cmp_eq_u32 s{SW}, 3
    s_cbranch_scc1 {name}_pfx
    s_lshr_b32 s32, s{SW}, 1
    s_xor_b32 s32, s32, 1
    v_lshrrev_b32 v12, s32, v10
    v_and_b32 v13, s32, v10
    v_add_u32 v13, s32, v13
    v_lshlrev_b32 v12, 3, v12
    v_add_u32 v12, v12, v11
    v_lshl_add_u32 v12, v12, 3, s31
    v_mul_u32_u24 v12, 3072, v12
    v_lshl_add_u32 v12, v13, 10, v12
    s_and_b32 s33, s{SW}, 1
    s_mul_i32 s33, s33, {4*196608}
    s_lshl_b32 s34, s{SC}, 7
    s_add_u32 s33, s33, s34
    v_add_u32 v12, s33, v12
    s_waitcnt lgkmcnt(0)
    global_load_dword v{EP+30}, v12, s[{PW}:{PW+1}]
    s_branch {name}_pfd
    """)
    k.label(f"{name}_pfx")
    k.e(f"""
    s_xor_b32 s33, s{SC}, 4
    s_lshl_b32 s33, s33, 13
    s_lshl_b32 s34, s{SRB}, 16
    s_add_u32 s33, s33, s34
    v_lshlrev_b32 v12, 10, v10
    v_lshl_add_u32 v12, v11, 7, v12
    v_add_u32 v12, s33, v12
    v_lshlrev_b32 v13, 2, v0
    v_add_u32 v13, {SY}, v13
    v_mov_b32 v15, 0
    ds_write_b32 v13, v15
    s_waitcnt lgkmcnt(0)
    global_load_dword v{EP+30}, v12, s[{PX}:{PX+1}]
    """)
    k.label(f"{name}_pfd")
    k.e("s_barrier")
    k.e(f"s_lshl_b32 s33, s30, 2\ns_add_u32 s33, s33, s{SW}")
    code_prefetch(k, 0, 4, 33, 2, 10, EP+31, 34)
    k.e(f"""
    s_mov_b32 s{WS}, s{PWS}
    s_mov_b32 s{WS+1}, s{PWS+1}
    s_mov_b32 s{SONE}, 0x3f803f80
    s_and_b32 s{SRH}, s{SW}, 1
    s_lshr_b32 s{SHP}, s{SW}, 1
    v_and_b32 v10, 31, v0
    v_lshrrev_b32 v9, 5, v0
    v_bfe_u32 v8, v0, 1, 3
    v_xor_b32 v8, v8, v9
    s_lshl_b32 s34, s{SRH}, 12
    s_lshl_b32 s35, s{SRH}, 1
    s_xor_b32 s35, s35, s{SHP}
    s_lshl_b32 s36, s35, 5
    v_lshlrev_b32 v8, 4, v8
    v_lshl_add_u32 v8, v10, 7, v8
    v_add_u32 v8, s34, v8
    v_xor_b32 v{XA}, s36, v8
    v_xor_b32 v{XA+1}, 32, v{XA}
    v_xor_b32 v{XA+2}, 64, v{XA}
    v_xor_b32 v{XA+3}, 96, v{XA}
    """)
    k.e(f"""
    v_bfe_u32 v8, v0, 2, 2
    v_lshlrev_b32 v7, 7, v8
    v_lshrrev_b32 v8, 1, v8
    v_xor_b32 v8, s{SHP}, v8
    v_lshl_add_u32 v7, v8, 6, v7
    v_bfe_u32 v8, v0, 4, 1
    v_lshl_add_u32 v7, v8, 5, v7
    v_and_b32 v8, 3, v0
    v_lshl_add_u32 v7, v8, 3, v7
    v_add_u32 v7, {RING}, v7
    v_lshl_add_u32 v13, v9, 11, v7
    s_lshl_b32 s36, s35, 12
    v_xor_b32 v{WA}, s36, v13
    v_xor_b32 v{WA+1}, 4096, v{WA}
    v_xor_b32 v{WA+2}, 8192, v{WA}
    v_xor_b32 v{WA+3}, 12288, v{WA}
    v_and_b32 v8, 15, v0
    v_bfe_u32 v13, v0, 4, 1
    v_sub_u32 v6, v8, v13
    v_mov_b32 v14, 0x3f803f80
    """)
    for b in (1, 2):
        k.e(f"v_cmp_eq_u32 vcc, {2*b}, v6")
        for r in range(4): k.e(f"v_cndmask_b32 v{BP+4*(b-1)+r}, 0, v14, vcc")
    for r in range(4): k.e(f"v_mov_b32 v{ST+r}, 0")
    k.e(f"""
    v_lshlrev_b32 v{E}, 4, v0
    s_lshl_b32 s34, s{SW}, 10
    s_add_u32 s36, s34, {CSX}
    v_add_u32 v{E+1}, s36, v{E}
    s_add_u32 s36, s34, {CSB}
    v_lshlrev_b32 v{E+3}, 6, v8
    v_lshrrev_b32 v13, 4, v0
    v_lshl_add_u32 v{E+3}, v13, 4, v{E+3}
    v_add_u32 v{E+3}, s36, v{E+3}
    v_lshlrev_b32 v13, 4, v9
    v_add_u32 v{E+4}, s36, v13
    v_lshlrev_b32 v14, 2, v10
    v_add_u32 v{E+5}, s36, v14
    s_lshl_b32 s36, s{SRH}, 7
    s_add_u32 s36, s36, {SY+STL}
    v_add_u32 v{E+6}, s36, v14
    v_add_u32 v{E+7}, s36, v13
    v_bfe_u32 v{E+2}, v0, 4, 1
    v_lshlrev_b32 v{E+2}, 16, v{E+2}
    v_lshl_add_u32 v{E+2}, v9, 8, v{E+2}
    v_lshl_add_u32 v{E+2}, v8, 4, v{E+2}
    s_lshl_b32 s36, s{SW}, 9
    s_add_u32 s36, s36, {SY+STX}
    v_lshlrev_b32 v5, 3, v0
    v_add_u32 v5, s36, v5
    s_lshl_b32 s36, s{SW}, 2
    v_add_u32 v4, s36, v{VSY}
    s_lshl_b32 s34, s{SC}, 2
    s_lshl_b32 s36, s{SHP}, 1
    s_add_u32 s34, s34, s36
    s_lshl_b32 s34, s34, 16
    s_lshl_b32 s36, s{SRB}, 1
    s_add_u32 s36, s36, s{SRH}
    s_lshl_b32 s36, s36, 10
    s_add_u32 s36, s34, s36
    s_add_u32 s37, s36, 0x10000
    s_add_u32 s38, s36, {VF}
    """)
    k.e("s_mov_b32 s10, 0xffff0000\ns_mov_b32 s11, 0xffff0000\ns_mov_b64 exec, s[10:11]")
    for r in range(80): k.e(f"v_mov_b32 v{V+r}, 0x3f803f80")
    k.e("s_mov_b64 exec, -1")
    for r in range(16):
        k0 = 8 * (r >> 2) + (r & 3)
        k.e(f"s_mov_b32 s{SMASK+2*r}, 0x{(0xffffffff << k0) & 0xffffffff:08x}\ns_mov_b32 s{SMASK+2*r+1}, 0x{(0xffffffff << (k0+4)) & 0xffffffff:08x}")

    lg = Cnt(k, 'lgkmcnt', 15)
    FLG = 2
    XF2 = AK
    def reads(g, u):
        if g < 8:
            lg.op(f"ds_read_b128 {vr(XF+4*u,4)}, v{XA+u} offset:{g*8192}")
            so = (KVSLOT[g] % 8) * 8192
            for seg in range(2):
                d = WF + 8 * u + 4 * seg
                lg.op(f"ds_read_b64_tr_b16 {vr(d,2)}, v{WA+u} offset:{so+seg*1024}\nds_read_b64_tr_b16 {vr(d+2,2)}, v{WA+u} offset:{so+seg*1024+512}")
        else:
            ch = 2 * (g - 8) + (u >> 1); so = (QSLOT[ch] % 8) * 8192
            for z in range(2):
                s = 2 * (u & 1) + z
                lg.op(f"ds_read_b128 {vr(XF2+8*u+4*z,4)}, v{XA+s} offset:{ch*8192}")
                d = WF + 8 * u + 4 * z
                lg.op(f"ds_read_b64_tr_b16 {vr(d,2)}, v{WA+s} offset:{so}\nds_read_b64_tr_b16 {vr(d+2,2)}, v{WA+s} offset:{so+512}")
        lg.tags[(g, u)] = lg.n
    def window(g):
        hi = lambda g: (KVSLOT[g] >= 8) if g < 8 else (QSLOT[2 * (g - 8)] >= 8)
        if g in (0, 8): return
        if hi(g) != hi(g - 1):
            for s in range(4): k.e(f"v_add_u32 v{WA+s}, {65536 if hi(g) else -65536}, v{WA+s}")
    def bigs(g, u):
        if g < 8:
            x = vr(XF + 4 * u, 4); first = (g == 0 and u == 0)
            return [f"v_mfma_f32_32x32x16_bf16 {vr(AK,16)}, {vr(WF+8*u,4)}, {x}, {'0' if first else vr(AK,16)}",
                    f"v_mfma_f32_32x32x16_bf16 {vr(AV,16)}, {x}, {vr(WF+8*u+4,4)}, {'0' if first else vr(AV,16)}"]
        return [f"v_mfma_f32_32x32x16_bf16 {vr(AQ,16)}, {vr(WF+8*u+4*z,4)}, {vr(XF2+8*u+4*z,4)}, {'0' if (g == 8 and u == 0 and z == 0) else vr(AQ,16)}" for z in range(2)]
    def smalls(g, u):
        first = (g in (0, 8) and u == 0)
        return [f"v_mfma_f32_16x16x32_bf16 {vr(AC,4)}, {vr(WF+8*u+4*z,4)}, {vr(BP+(4*z if g < 8 else 0),4)}, {'0' if (first and z == 0) else vr(AC,4)}" for z in range(2)]
    def stats(u):
        o = []
        for r in range(4):
            o += [f"v_dot2_f32_bf16 v{ST+(r&1)}, v{XF+4*u+r}, v{XF+4*u+r}, v{ST+(r&1)}",
                  f"v_dot2_f32_bf16 v{ST+2+(r&1)}, v{XF+4*u+r}, s{SONE}, v{ST+2+(r&1)}"]
        return o
    def mfmas(g, u):
        lg.wait((g, u))
        b = bigs(g, u)
        sm = smalls(g, u) if ((g < 8 and u < 2) or (g >= 8 and u % 2 == 0)) else [None, None]
        st = stats(u) if (g < 8 and u % 2 == 0) else []
        for z in range(2):
            k.e(b[z])
            for t in st[4 * z:4 * z + 4]: k.e(t)
            if sm[z]: k.e(sm[z])
    def cons(n):
        lg.op(f"v_mov_b32 v6, {n}\nds_write_b32 v4, v6 offset:{CONS}")
    def landed_spin(g):
        wait_lds(k, LD, 2, g + 1, FLG)
    slow = []
    def run_groups(g0, g1, hook):
        landed_spin(g0)
        lg.n = 0
        reads(g0, 0); reads(g0, 1)
        for g in range(g0, g1):
            last = g == g1 - 1
            reads(g, 2)
            if last:
                reads(g, 3); return
            mfmas(g, 0)
            reads(g, 3)
            lg.op(f"ds_read_b64 {vr(FLG,2)}, v{VSY} offset:{LD}", 'f')
            mfmas(g, 1)
            lg.all()
            hook(g)
            cons(g + 1)
            window(g + 1)
            Ls, Lm = uid(k, 'slw'), uid(k, 'mrg')
            k.e(f"""v_min_u32 v{FLG}, v{FLG}, v{FLG+1}
            v_readfirstlane_b32 s30, v{FLG}
            s_cmp_lt_u32 s30, {g+2}
            s_cbranch_scc1 {Ls}""")
            lg.n = 0; lg.tags[(g, 2)] = lg.tags[(g, 3)] = -100
            sv = k.lines;
            reads(g + 1, 0)
            for t in mf_nowait(g, 2): k.e(t)
            reads(g + 1, 1)
            for t in mf_nowait(g, 3): k.e(t)
            k.label(Lm)
            slow.append((Ls, Lm, g))
    def mf_nowait(g, u):
        b = bigs(g, u)
        sm = smalls(g, u) if (g >= 8 and u % 2 == 0) else [None, None]
        st = stats(u) if (g < 8 and u % 2 == 0) else []
        o = []
        for z in range(2):
            o.append(b[z]); o += st[4 * z:4 * z + 4]
            if sm[z]: o.append(sm[z])
        return o
    def emit_slow():
        for Ls, Lm, g in slow:
            k.label(Ls)
            for t in mf_nowait(g, 2) + mf_nowait(g, 3): k.e(t)
            landed_spin(g + 1)
            n0 = lg.n
            reads(g + 1, 0); reads(g + 1, 1)
            lg.n = n0
            k.e(f"s_branch {Lm}")
    k.stamp(2)
    def hookA(g):
        if g == 0: k.stamp(3)
        if g == 6: lg.op(f"ds_write_b128 v{E+1}, {vr(AC,4)}")
    run_groups(0, 8, hookA)
    k.e(f"v_add_f32 v12, v{ST}, v{ST+1}\nv_add_f32 v13, v{ST+2}, v{ST+3}")
    lg.op(f"ds_write_b64 v5, v[12:13]")
    cons(8)
    k.stamp(4)
    for u in range(4):
        lg.wait((7, u))
        sm = smalls(7, u); st = stats(u)
        for z in range(2):
            k.e(sm[z])
            for t in st[4 * z:4 * z + 4]: k.e(t)
    bg = [t for u in range(4) for t in bigs(7, u)]
    bk = bg[0::2]; bv = bg[1::2]
    k.e(bk[0]); k.e(bk[1])
    wait_lds(k, CONS, 4, 8, 8)
    PC = 8; CK = AQ; VA, VN = EP, EP + 16
    k.e(f"""
    v_xor_b32 v14, 1024, v{E+1}
    v_xor_b32 v15, 1024, v5
    ds_read_b128 {vr(PC,4)}, v14
    ds_read_b64 v[12:13], v15
    """)
    k.e(bk[2])
    k.e(f"v_add_f32 v{ST}, v{ST}, v{ST+1}\nv_add_f32 v{ST+2}, v{ST+2}, v{ST+3}\ns_waitcnt lgkmcnt(0)")
    for r in range(4): k.e(f"v_add_f32 v{PC+r}, v{PC+r}, v{AC+r}")
    k.e(f"ds_write_b128 v{E+3}, {vr(PC,4)}")
    k.e(bk[3])
    k.e(f"""
    v_add_f32 v{ST}, v{ST}, v12
    v_add_f32 v{ST+2}, v{ST+2}, v13
    v_mov_b32 v{ST+1}, v{ST}
    v_mov_b32 v{ST+3}, v{ST+2}
    s_waitcnt lgkmcnt(0)
    """)
    for i in range(4): k.e(f"ds_read_b128 {vr(CK+4*i,4)}, v{E+4} offset:{128+32*i}")
    k.e(f"ds_read_b32 v14, v{E+5} offset:256")
    k.e(bv[0])
    k.e(f"""
    v_permlane32_swap_b32 v{ST}, v{ST+1}
    v_permlane32_swap_b32 v{ST+2}, v{ST+3}
    v_add_f32 v{ST}, v{ST}, v{ST+1}
    v_add_f32 v{ST+2}, v{ST+2}, v{ST+3}
    """)
    k.e(bv[1])
    NM, RI = 8, 10
    ln_final(k, ST + 2, ST, NM, RI, 12)
    k.e(bv[2])
    k.e(f"""
    ds_write_b32 v{E+6}, v{RI}
    ds_write_b32 v{E+6}, v{NM} offset:256
    v_mov_b32 v{NM+1}, v{NM}
    v_mov_b32 v{RI+1}, v{RI}
    """)
    k.e(bv[3])
    k.e("s_waitcnt vmcnt(0) lgkmcnt(0)")
    for j in range(4): k.e(f"ds_read_b128 {vr(VN+4*j,4)}, v{E+7} offset:{256+32*j}")
    for j in range(4): k.e(f"ds_read_b128 {vr(VA+4*j,4)}, v{E+7} offset:{32*j}")
    def fin(acc, cs2, nm2, a2):
        for i in range(8): k.e(f"v_pk_fma_f32 {vr(acc+2*i,2)}, {cs2(i)}, {nm2(i)}, {vr(acc+2*i,2)}")
        for i in range(8): k.e(f"v_pk_mul_f32 {vr(acc+2*i,2)}, {vr(acc+2*i,2)}, {a2(i)}")
        for i in range(8): k.e(f"v_cvt_pk_bf16_f32 v{acc+i}, v{acc+2*i}, v{acc+2*i+1}")
    fin(AK, lambda i: vr(CK + 2 * i, 2), lambda i: vr(NM, 2), lambda i: vr(RI, 2))
    k.e(f"""
    buffer_store_dwordx4 {vr(AK,4)}, v{E}, s[{WS}:{WS+3}], s36 offen sc1
    buffer_store_dwordx4 {vr(AK+4,4)}, v{E}, s[{WS}:{WS+3}], s37 offen sc1
    s_waitcnt lgkmcnt(0)
    v_mov_b32 v15, v14
    """)
    fin(AV, lambda i: 'v[14:15]', lambda i: vr(VN + 2 * i, 2), lambda i: vr(VA + 2 * i, 2))
    k.e(f"""
    buffer_store_dwordx4 {vr(AV,4)}, v{E+2}, s[{WS}:{WS+3}], s38 offen sc1
    buffer_store_dwordx4 {vr(AV+4,4)}, v{E+2}, s[{WS}:{WS+3}], s38 offen offset:512 sc1
    """)
    k.stamp(5)
    k.e(f"""
    v_lshrrev_b32 v13, 5, v0
    v_lshl_add_u32 v13, v13, 10, v7
    s_lshl_b32 s36, s35, 11
    v_xor_b32 v{WA}, s36, v13
    v_xor_b32 v{WA+1}, 2048, v{WA}
    v_xor_b32 v{WA+2}, 4096, v{WA}
    v_xor_b32 v{WA+3}, 6144, v{WA}
    v_and_b32 v12, 15, v0
    v_bfe_u32 v13, v0, 4, 1
    v_cmp_eq_u32 vcc, v12, v13
    v_mov_b32 v14, 0x3f803f80
    """)
    for r in range(4): k.e(f"v_cndmask_b32 v{BP+r}, 0, v14, vcc")
    k.e(f"""
    v_mul_u32_u24 v12, 1040, v0
    s_lshl_b32 s36, s{SRB}, 3
    s_add_u32 s36, s36, s{SC}
    s_lshl_b32 s37, s36, 7
    s_lshl_b32 s38, s{SW}, 2
    s_add_u32 s38, s38, s37
    s_add_u32 s38, s38, {MB1}
    s_sub_u32 s30, 32, s{SRB}
    s_min_u32 s30, s30, 5
    s_bfm_b64 s[10:11], s30, 0
    v_mul_f32 v{RI}, {f32(QSCALE)}, v{RI}
    v_mul_f32 v{RI+1}, {f32(QSCALE)}, v{RI+1}
    """)
    get_epoch(k, 13)
    def hookB(g):
        if g == 8:
            k.e(f"""
            v_mov_b32 v13, s{SEP}
            s_mov_b64 exec, s[10:11]
            s_waitcnt vmcnt(0)
            buffer_store_dword v13, v12, s[{WS}:{WS+3}], s38 offen sc1
            s_mov_b64 exec, -1
            """)
            k.stamp(6)
    run_groups(8, 12, hookB)
    lg.op(f"ds_write_b128 v{E+1}, {vr(AC,4)} offset:12288")
    cons(12)
    for u in range(4):
        lg.wait((11, u))
        for t in smalls(11, u): k.e(t)
    bg = [t for u in range(4) for t in bigs(11, u)]
    for t in bg[:2]: k.e(t)
    wait_lds(k, CONS, 4, 12, 12)
    k.e(f"v_xor_b32 v6, 1024, v{E+1}\nds_read_b128 {vr(12,4)}, v6 offset:12288")
    for t in bg[2:4]: k.e(t)
    k.e("s_waitcnt lgkmcnt(0)")
    for r in range(4): k.e(f"v_add_f32 v{12+r}, v{12+r}, v{AC+r}")
    k.e(f"ds_write_b128 v{E+3}, {vr(12,4)}")
    for t in bg[4:6]: k.e(t)
    k.e("s_waitcnt lgkmcnt(0)")
    CQ = EP
    for i in range(4): k.e(f"ds_read_b128 {vr(CQ+4*i,4)}, v{E+4} offset:{32*i}")
    for t in bg[6:8]: k.e(t)
    k.e(f"""
    s_lshl_b32 s36, s{SHP}, 12
    s_lshl_b32 s30, s{SRH}, 10
    s_add_u32 s36, s36, s30
    s_add_u32 s36, s36, {QXB}
    v_add_u32 v12, s36, v{E}
    s_lshl_b32 s36, s{SW}, 11
    s_add_u32 s36, s36, {QXB}
    v_add_u32 v13, s36, v{E}
    s_waitcnt lgkmcnt(0)
    """)
    fin(AQ, lambda i: vr(CQ + 2 * i, 2), lambda i: vr(NM, 2), lambda i: vr(RI, 2))
    k.e(f"""
    ds_write_b128 v12, {vr(AQ,4)}
    ds_write_b128 v12, {vr(AQ+4,4)} offset:2048
    v_mov_b32 v6, 13
    ds_write_b32 v4, v6 offset:{CONS}
    """)
    return emit_slow

def attention(k, name):
    S = lambda b: SB + 16 * b
    kf = lambda j: vr(KR + 4 * j, 4)
    VL, VV, VF2 = 168, 169, 170
    CV = 171
    SKB = 32
    SO = 37
    SFAIL, SFIN = 30, 31
    k.e(f"""
    v_lshlrev_b32 v{VL}, 4, v0
    v_lshrrev_b32 v2, 5, v0
    v_lshlrev_b32 v2, 8, v2
    v_and_b32 v3, 15, v0
    v_lshl_add_u32 v2, v3, 4, v2
    v_add_u32 v{VV}, {VF-KF}, v2
    v_mov_b32 v3, 0xffff
    v_mov_b32 v5, 0xffff0000
    """)
    for i in range(8):
        k.e(f"""
        v_cndmask_b32_e64 v6, 0, v3, {sr(SMASK+4*i,2)}
        v_cndmask_b32_e64 v7, 0, v5, {sr(SMASK+4*i+2,2)}
        v_or_b32 v{M+i}, v6, v7
        """)
    k.e(f"""
    v_lshrrev_b32 v2, 1, v0
    v_lshlrev_b32 v2, 4, v2
    v_and_b32 v3, 1, v0
    v_lshl_add_u32 v2, v3, 2, v2
    s_lshl_b32 s30, s{SHP}, 3
    s_add_u32 s31, s37, s30
    s_add_u32 s31, s31, {MB1}
    s_min_u32 s30, s{SRB}, 4
    s_lshl_b32 s30, s30, 1
    s_add_u32 s30, s30, 2
    s_bfm_b64 s[10:11], s30, 0
    s_lshl_b32 s30, s{SC}, 2
    s_add_u32 s30, s30, s{SW}
    s_lshl_b32 s36, s30, 16
    s_lshl_b32 s38, s{SRB}, 11
    s_add_u32 s36, s36, s38
    """)
    for p in range(4):
        k.e(f"s_sub_u32 s{SKB+p}, s36, {(4-p)*2048}\ns_cmp_ge_u32 s{SRB}, {4-p}\ns_cselect_b32 s{SKB+p}, s{SKB+p}, {OOB}")
    k.e(f"""
    v_lshlrev_b32 v{VF2}, 8, v0
    s_lshl_b32 s3, s30, 2
    s_add_u32 s3, s3, s38
    s_add_u32 s3, s3, {MB2}
    v_add_u32 v{VF2}, s3, v{VF2}
    s_lshl_b32 s37, s{SRB}, 16
    s_lshl_b32 s38, s30, 10
    s_add_u32 s37, s37, s38
    s_add_u32 s37, s37, {OF}
    s_add_u32 s38, s37, 32768
    v_xor_b32 v3, 4, v4
    """)
    wait_lds(k, CONS, 1, 13, 5, vaddr=3)
    k.e(f"""
    ds_read_b128 {vr(Q,4)}, v13
    ds_read_b128 {vr(Q+4,4)}, v13 offset:1024
    v_mov_b32 v6, 14
    s_waitcnt lgkmcnt(0)
    ds_write_b32 v4, v6 offset:{CONS}
    """)
    k.stamp(7)
    k.e("s_mov_b64 exec, s[10:11]")
    poll(k, 2, 's31', 3, sleep=1)
    k.e("s_mov_b64 exec, -1\ns_mov_b32 s10, 0x0000ffff\ns_mov_b32 s11, 0x0000ffff")
    k.stamp(8)
    vm = Cnt(k, 'vmcnt', 63)
    def ldk(j): vm.op(f"buffer_load_dwordx4 {kf(j)}, v{VL}, s[{WS}:{WS+3}], s{SKB+j//2} offen offset:{(j%2)*1024} sc1", ('k', j))
    def ldv(j):
        k.e("s_mov_b64 exec, s[10:11]")
        for hf in range(2):
            vm.op(f"buffer_load_dwordx4 {vr(V+8*j+4*hf,4)}, v{VV}, s[{WS}:{WS+3}], s{SKB+j//2} offen offset:{(j%2)*1024+hf*512} sc1", ('v', j))
        k.e("s_mov_b64 exec, -1")
    ldk(8); ldk(0); ldk(7); ldk(6); ldv(8); ldv(0)
    for j in range(7, 0, -1):
        if j - 2 >= 1: ldk(j - 2)
        ldv(j)
    ldk(9); ldv(9)
    k.e(f"s_mov_b32 s{SFAIL}, 0\ns_cmp_lt_u32 s{SRB}, 4\ns_cbranch_scc1 {name}_slow_entry")

    def merge(bd, bf):
        for r in range(16):
            k.e(f"v_cndmask_b32_e64 v{S(bd)+r}, v{S(bf)+r}, v{S(bd)+r}, {sr(SMASK+2*r,2)}")
    def finish(a, O, lab_fail):
        k.e(f"""
        v_mov_b32 v{MX}, {f32(2.0**-40)}
        v_mov_b32 v{MX+1}, {f32(2.0**40)}
        v_med3_f32 v{MX}, v{O+8}, v{MX}, v{MX+1}
        v_cmp_neq_f32 vcc, v{MX}, v{O+8}
        v_rcp_f32 v{MX}, v{O+8}
        """)
        if lab_fail: k.e(f"s_cbranch_vccnz {lab_fail}")
        for r in range(8): k.e(f"v_mul_f32 v{O+r}, v{O+r}, v{MX}")
        for i in range(4): k.e(f"v_cvt_pk_bf16_f32 v{T+i}, v{O+2*i}, v{O+2*i+1}")
        k.e(f"buffer_store_dwordx4 {vr(T,4)}, v{VL}, s[{WS}:{WS+3}], s{SO+a} offen sc1")
    def oflag(a):
        k.e(f"""
        v_mov_b32 v{MX}, s{SEP}
        s_mov_b64 exec, 0xff
        s_waitcnt vmcnt(0)
        buffer_store_dword v{MX}, v{VF2}, s[{WS}:{WS+3}], 0 offen offset:{128*a} sc1
        s_mov_b64 exec, -1
        """)
    steps = []
    for a in range(2):
        steps.append((a, 'm', (8 + a, a)))
        for j in range(7 + a, a, -1): steps.append((a, 'f', (j,)))
    SBUF = [S(0), S(1), S(2), C]
    waited = set()
    def need(t):
        if t not in waited: vm.wait(t); waited.add(t)
    def qk(dst, j, a):
        need(('k', j))
        return f"v_mfma_f32_32x32x16_bf16 {vr(dst,16)}, {kf(j)}, {vr(Q+4*a,4)}, 0"
    free = list(SBUF); buf = {}
    def issue_qk(n):
        a, kind, tl = steps[n]
        out = []
        for j in tl:
            b = free.pop(0); buf[(n, j)] = b; out.append((b, j, a))
        return out
    ofirst = [True, True]
    def pv(a, j, half, preg):
        O = (O0, O1)[a]
        c = '0' if ofirst[a] else vr(O, 16); ofirst[a] = False
        return ('pv', j, f"v_mfma_f32_32x32x16_bf16 {vr(O,16)}, {vr(V+8*j+4*half,4)}, {vr(preg,4)}, {c}")
    for b, j, a in issue_qk(0) + issue_qk(1): k.e(qk(b, j, a))
    pend = []; rel = []
    for n, (a, kind, tl) in enumerate(steps):
        sb = buf[(n, tl[0])]
        if kind == 'm':
            bf = buf[(n, tl[1])]
            for r in range(16): k.e(f"v_cndmask_b32_e64 v{sb+r}, v{bf+r}, v{sb+r}, {sr(SMASK+2*r,2)}")
            free.append(bf)
        seq = list(pend); pend = []
        free += rel; rel = []
        if n + 2 < len(steps): seq += [('qk',) + x for x in issue_qk(n + 2)]
        per = 16 // (len(seq) + 1); e = 0
        for x in seq:
            for _ in range(per): k.e(f"v_exp_f32 v{sb+e}, v{sb+e}"); e += 1
            if x[0] == 'qk': k.e(qk(*x[1:]))
            else: need(('v', x[1])); k.e(x[2])
        while e < 16: k.e(f"v_exp_f32 v{sb+e}, v{sb+e}"); e += 1
        for i in range(8): k.e(f"v_cvt_pk_bf16_f32 v{sb+i}, v{sb+2*i}, v{sb+2*i+1}")
        if kind == 'm':
            for i in range(8): k.e(f"v_and_b32 v{sb+8+i}, v{sb+i}, v{M+i}")
            for i in range(8): k.e(f"v_xor_b32 v{sb+i}, v{sb+i}, v{sb+8+i}")
            pend = [pv(a, tl[0], 0, sb + 8), pv(a, tl[0], 1, sb + 12), pv(a, tl[1], 0, sb), pv(a, tl[1], 1, sb + 4)]
        else:
            pend = [pv(a, tl[0], 0, sb), pv(a, tl[0], 1, sb + 4)]
        rel = [sb]
        if n == 9:
            L = uid(k, 'f0'); L2 = uid(k, 'f0d')
            finish(0, O0, L)
            k.e(f"s_branch {L2}")
            k.label(L); k.e(f"s_mov_b32 s{SFAIL}, 1")
            k.label(L2)
            k.stamp(9)
        if n == 13:
            L = uid(k, 'g0')
            k.e(f"s_cmp_lg_u32 s{SFAIL}, 0\ns_cbranch_scc1 {L}")
            oflag(0)
            k.label(L)
    for x in pend: k.e(x[2])
    k.e(f"s_cmp_lg_u32 s{SFAIL}, 0\ns_cbranch_scc1 {name}_max0")
    finish(1, O1, f"{name}_max1")
    oflag(1)
    k.label(f"{name}_attn_done")

    def slow_parts():
        def setC(val):
            for r in range(16): k.e(f"v_mov_b32 v{C+r}, {val}")
        def switch(j):
            if j in (7, 5, 3, 1):
                L = uid(k, 'sw')
                k.e(f"s_cmp_lg_u32 s{SRB}, {(7-j)//2}\ns_cbranch_scc1 {L}")
                setC(NBIG); k.label(L)
        def qks(b, j, a): k.e(f"v_mfma_f32_32x32x16_bf16 {vr(S(b),16)}, {kf(j)}, {vr(Q+4*a,4)}, {vr(C,16)}")
        def first(b, j, a):
            L = uid(k, 'fi'); L2 = uid(k, 'fd')
            k.e(f"s_cmp_lt_u32 s{SRB}, 4\ns_cbranch_scc1 {L}")
            qks(b, j, a); k.e(f"s_branch {L2}")
            k.label(L)
            for r in range(16): k.e(f"v_mov_b32 v{S(b)+r}, {NBIG}")
            k.label(L2)
        k.label(f"{name}_slow_entry")
        k.e("s_waitcnt vmcnt(0)")
        for a in range(2):
            jd, jf = 8 + a, a
            mids = list(range(jd - 1, jf, -1))
            k.label(f"{name}_slow{a}_c0")
            k.e(f"v_mov_b32 v{CV}, 0\ns_mov_b32 s{SFIN}, 0")
            k.label(f"{name}_slow{a}")
            setC(f"v{CV}")
            qks(0, jd, a); first(1, jf, a)
            switch(mids[0]); qks(2, mids[0], a)
            merge(0, 1)
            bufs = [0, 2, 1]; pend = []; of = [True]
            def pvs(j, half, preg):
                c = '0' if of[0] else vr(O0, 16); of[0] = False
                return f"v_mfma_f32_32x32x16_bf16 {vr(O0,16)}, {vr(V+8*j+4*half,4)}, {vr(preg,4)}, {c}"
            for t in range(8):
                cur = bufs[t % 3]; nn = bufs[(t + 2) % 3]; sb = S(cur)
                seq = list(pend) + ([('qk', mids[t + 1])] if t + 1 < 7 else []); pend = []
                per = 16 // (len(seq) + 1); e = 0
                for x in seq:
                    for _ in range(per): k.e(f"v_exp_f32 v{sb+e}, v{sb+e}"); e += 1
                    if isinstance(x, tuple): switch(x[1]); qks(nn, x[1], a)
                    else: k.e(x)
                while e < 16: k.e(f"v_exp_f32 v{sb+e}, v{sb+e}"); e += 1
                for i in range(8): k.e(f"v_cvt_pk_bf16_f32 v{sb+i}, v{sb+2*i}, v{sb+2*i+1}")
                if t == 0:
                    for i in range(8): k.e(f"v_and_b32 v{sb+8+i}, v{sb+i}, v{M+i}")
                    for i in range(8): k.e(f"v_xor_b32 v{sb+i}, v{sb+i}, v{sb+8+i}")
                    pend = [pvs(jd, 0, sb + 8), pvs(jd, 1, sb + 12), pvs(jf, 0, sb), pvs(jf, 1, sb + 4)]
                else:
                    pend = [pvs(mids[t - 1], 0, sb), pvs(mids[t - 1], 1, sb + 4)]
            for x in pend: k.e(x)
            L = uid(k, 'sf'); L2 = uid(k, 'sg')
            k.e(f"s_cmp_lg_u32 s{SFIN}, 0\ns_cbranch_scc1 {L}")
            k.e(f"""
            v_mov_b32 v{MX}, {f32(2.0**-40)}
            v_mov_b32 v{MX+1}, {f32(2.0**40)}
            v_med3_f32 v{MX}, v{O0+8}, v{MX}, v{MX+1}
            v_cmp_neq_f32 vcc, v{MX}, v{O0+8}
            s_cbranch_vccnz {name}_max{a}
            """)
            k.label(L)
            finish(a, O0, None)
            oflag(a)
        k.e(f"s_branch {name}_attn_done")
        for a in range(2):
            jd, jf = 8 + a, a
            k.label(f"{name}_max{a}")
            setC(0)
            qks(0, jd, a); first(1, jf, a)
            merge(0, 1)
            k.e(f"v_mov_b32 v{MX}, {NBIG}")
            for j in [None] + list(range(jd - 1, jf, -1)):
                if j is not None: switch(j); qks(0, j, a)
                for i in range(8): k.e(f"v_max3_f32 v{MX}, v{S(0)+2*i}, v{S(0)+2*i+1}, v{MX}")
            k.e(f"""
            v_mov_b32 v{MX+1}, v{MX}
            v_permlane32_swap_b32 v{MX}, v{MX+1}
            v_max_f32 v{MX}, v{MX}, v{MX+1}
            v_xor_b32 v{CV}, 0x80000000, v{MX}
            s_mov_b32 s{SFIN}, 1
            s_branch {name}_slow{a}
            """)
    return slow_parts

def oproj(k, name):
    OB, ACC, G, XR_, TT, AF = 16, 48, 80, 88, 96, 176
    SX_, SO_ = 44, 48
    k.label(f"{name}_op")
    srd(k, SX_, PX, '0x200000'); srd(k, SO_, POUT, '0x200000')
    k.e(f"""
    v_lshlrev_b32 v2, 4, v0
    v_and_b32 v4, 31, v0
    s_lshl_b32 s35, s32, 5
    v_add_u32 v3, s35, v4
    s_lshl_b32 s34, s{SRB}, 6
    v_add_u32 v4, s34, v3
    v_lshrrev_b32 v5, 5, v0
    v_lshlrev_b32 v6, 6, v5
    v_lshl_add_u32 v6, v4, 10, v6
    s_lshl_b32 s34, s{SC}, 7
    s_lshl_b32 s35, s33, 4
    s_add_u32 s34, s34, s35
    v_add_u32 v6, s34, v6
    buffer_load_dwordx4 {vr(XR_,4)}, v6, s[{SX_}:{SX_+3}], 0 offen
    v_lshl_add_u32 v3, v3, 2, v{VSY}
    ds_read_b32 v9, v3 offset:{STL}
    ds_read_b32 v8, v3 offset:{STL+256}
    v_bfe_u32 v10, v0, 2, 2
    v_lshl_add_u32 v11, v5, 2, v10
    v_lshlrev_b32 v11, 7, v11
    v_and_b32 v12, 1, v0
    v_lshl_add_u32 v11, v12, 6, v11
    v_lshrrev_b32 v10, 1, v10
    v_lshl_add_u32 v11, v10, 5, v11
    v_bfe_u32 v12, v0, 4, 1
    v_lshl_add_u32 v11, v12, 4, v11
    v_bfe_u32 v12, v0, 1, 1
    v_lshl_add_u32 v11, v12, 3, v11
    v_xor_b32 v11, s35, v11
    s_lshl_b32 s34, s33, 14
    v_add_u32 v10, s34, v11
    v_xor_b32 v11, 32, v10
    s_lshl_b32 s34, s33, 2
    v_add_u32 v7, s34, v{VSY}
    """)
    wait_lds(k, WOL, 1, 1, 12, 1, vaddr=7)
    for hd in range(8):
        for Tt in range(2):
            d = AF + 8 * hd + 4 * Tt
            k.e(f"ds_read_b64_tr_b16 {vr(d,2)}, v{10+Tt} offset:{hd*2048}\nds_read_b64_tr_b16 {vr(d+2,2)}, v{10+Tt} offset:{hd*2048+1024}")
        if hd % 2 == 1: k.e("s_waitcnt lgkmcnt(4)")
    for r in range(8): k.e(f"v_mov_b32 v{G+r}, 0")
    wait_lds(k, YD, 4, 1, 12, 1)
    k.e(f"""
    ds_read_b128 v[12:15], v{VSY} offset:{YD}
    ds_read_b128 {vr(TT,4)}, v{VSY} offset:{SELL}
    ds_read_b128 {vr(TT+4,4)}, v{VSY} offset:{SELL+16}
    s_waitcnt lgkmcnt(0)
    v_readfirstlane_b32 s34, v12
    v_lshlrev_b32 v12, 7, v5
    s_lshl_b32 s35, s33, 5
    s_add_u32 s35, s35, {SY+YL}
    v_add_u32 v12, s35, v12
    s_cmp_eq_u32 s34, 1
    s_cbranch_scc1 {name}_noy
    """)
    for j in range(8):
        L = uid(k, 'yj')
        k.e(f"""s_bitcmp0_b32 s34, {j+1}
        s_cbranch_scc1 {L}
        ds_read_b128 {vr(TT+8,4)}, v12 offset:{j*256}
        ds_read_b128 {vr(TT+12,4)}, v12 offset:{j*256+16}
        v_cmp_eq_u32 vcc, v{TT+j}, v4
        s_waitcnt lgkmcnt(0)""")
        for r in range(8): k.e(f"v_cndmask_b32 v{G+r}, v{G+r}, v{TT+8+r}, vcc")
        k.label(L)
    k.label(f"{name}_noy")
    k.e("s_waitcnt vmcnt(0)")
    XU = 112
    for i in range(4):
        k.e(f"""
        v_lshlrev_b32 v{XU+2*i}, 16, v{XR_+i}
        v_and_b32 v{XU+2*i+1}, 0xffff0000, v{XR_+i}
        v_add_f32 v{TT+2*i}, v{XU+2*i}, v8
        v_add_f32 v{TT+2*i+1}, v{XU+2*i+1}, v8
        v_cvt_pk_bf16_f32 v{TT+8+i}, v{TT+2*i}, v{TT+2*i+1}
        v_lshlrev_b32 v{TT+2*i}, 16, v{TT+8+i}
        v_and_b32 v{TT+2*i+1}, 0xffff0000, v{TT+8+i}
        v_mul_f32 v{TT+2*i}, v{TT+2*i}, v9
        v_mul_f32 v{TT+2*i+1}, v{TT+2*i+1}, v9
        v_cvt_pk_bf16_f32 v{TT+8+i}, v{TT+2*i}, v{TT+2*i+1}
        v_lshlrev_b32 v{TT+2*i}, 16, v{TT+8+i}
        v_and_b32 v{TT+2*i+1}, 0xffff0000, v{TT+8+i}
        """)
    for r in range(8): k.e(f"v_add_f32 v{G+r}, v{G+r}, v{TT+r}")
    for r in range(8): k.e(f"v_mul_f32 v{TT+r}, {f32(-LOG2E)}, v{G+r}")
    for r in range(8): k.e(f"v_exp_f32 v{TT+r}, v{TT+r}")
    for r in range(8): k.e(f"v_add_f32 v{TT+r}, 1.0, v{TT+r}")
    for r in range(8): k.e(f"v_rcp_f32 v{TT+r}, v{TT+r}")
    for r in range(8): k.e(f"v_mul_f32 v{G+r}, v{G+r}, v{TT+r}")
    k.e(f"""
    s_lshl_b32 s34, s{SRB}, 3
    s_add_u32 s34, s34, s{SC}
    s_lshl_b32 s34, s34, 8
    s_lshl_b32 s35, s32, 7
    s_add_u32 s34, s34, s35
    s_lshl_b32 s35, s33, 5
    s_add_u32 s34, s34, s35
    s_add_u32 s34, s34, {MB2}
    v_lshlrev_b32 v12, 2, v0
    s_lshl_b32 s35, s{SRB}, 16
    s_lshl_b32 s36, s32, 15
    s_add_u32 s35, s35, s36
    s_lshl_b32 s36, s33, 13
    s_add_u32 s35, s35, s36
    s_add_u32 s35, s35, {OF}
    s_add_u32 s36, s35, 4096
    s_mul_i32 s37, s32, {RED1-RED0}
    s_add_u32 s37, s37, {RED0}
    s_lshl_b32 s38, s32, 4
    v_add_u32 v14, s38, v{VSY}
    v_add_u32 v7, s38, v7
    """)
    for p in range(4):
        k.e(f"s_xor_b32 s38, s33, {p}\ns_mul_i32 s38, s38, 6144\ns_add_u32 s38, s38, s37\nv_add_u32 v{120+p}, s38, v2")
    k.stamp(10)
    k.e("s_mov_b64 exec, 0xff")
    poll(k, 12, 's34', 13, sleep=1)
    k.e("s_mov_b64 exec, -1")
    for hd in range(8):
        k.e(f"buffer_load_dwordx4 {vr(OB+4*hd,4)}, v2, s[{WS}:{WS+3}], s{35+hd//4} offen offset:{(hd%4)*1024} sc1")
    for hd in range(8):
        k.e(f"s_waitcnt vmcnt({7-hd})")
        for Tt in range(2):
            k.e(f"v_mfma_f32_32x32x16_bf16 {vr(ACC+16*Tt,16)}, {vr(AF+8*hd+4*Tt,4)}, {vr(OB+4*hd,4)}, {'0' if hd == 0 else vr(ACC+16*Tt,16)}")
    for p in range(1, 4):
        for i in range(2): k.e(f"ds_write_b128 v{120+p}, {vr(ACC+8*p+4*i,4)} offset:{(p-1)*2048+i*1024}")
    k.e(f"v_mov_b32 v13, 1\nds_write_b32 v7, v13 offset:{R0}")
    wait_lds(k, R0, 4, 1, TT, 0, vaddr=14)
    for p in range(3):
        for i in range(2): k.e(f"ds_read_b128 {vr(ACC+8+8*p+4*i,4)}, v120 offset:{p*2048+i*1024}")
    for p in range(3):
        k.e(f"s_waitcnt lgkmcnt({4-2*p})")
        for r in range(8): k.e(f"v_add_f32 v{ACC+r}, v{ACC+r}, v{ACC+8+8*p+r}")
    for r in range(8): k.e(f"v_fmac_f32 v{XU+r}, v{ACC+r}, v{G+r}")
    for i in range(4): k.e(f"v_cvt_pk_bf16_f32 v{ACC+i}, v{XU+2*i}, v{XU+2*i+1}")
    k.e(f"buffer_store_dwordx4 {vr(ACC,4)}, v6, s[{SO_}:{SO_+3}], 0 offen")
    k.stamp(11, True); k.stamp_flush12(TS, SW, WS)
    k.label(f"{name}_end")
    k.e("s_endpgm")

def kf_waves(k, name):
    k.label(f"{name}_kf")
    k.e(f"""
    s_cmp_eq_u32 s{SW}, 7
    s_cbranch_scc1 {name}_fw
    v_lshrrev_b32 v10, 3, v0
    v_and_b32 v11, 7, v0
    v_lshlrev_b32 v11, 4, v11
    s_lshl_b32 s33, s{SRB}, 6
    s_lshl_b32 s34, s{SC}, 3
    s_add_u32 s33, s33, s34
    v_add_u32 v9, s33, v10
    v_lshl_add_u32 v12, v9, 10, v11
    s_waitcnt lgkmcnt(0)
    """)
    XD, WD = 16, 48
    for i in range(8): k.e(f"global_load_dwordx4 {vr(XD+4*i,4)}, v12, s[{PX}:{PX+1}] offset:{128*i}")
    for i in range(8): k.e(f"global_load_dwordx4 {vr(WD+4*i,4)}, v11, s[{PWR}:{PWR+1}] offset:{128*i}")
    k.e(f"""
    s_barrier
    s_mov_b32 s{WS}, s{PWS}
    s_mov_b32 s{WS+1}, s{PWS+1}
    s_mov_b32 s{SONE}, 0x3f803f80
    v_mov_b32 v13, 0
    s_cmp_lg_u32 s2, 0
    s_cbranch_scc1 {name}_ep_poll
    s_memrealtime s[34:35]
    s_waitcnt lgkmcnt(0)
    s_or_b32 s{SEP}, s34, 1
    v_mov_b32 v14, s{SEP}
    global_store_dword v13, v14, s[{PDBG}:{PDBG+1}] sc1
    s_branch {name}_ep_done
    """)
    k.label(f"{name}_ep_poll")
    k.e("s_mov_b32 s3, 0x8000")
    k.label(f"{name}_ep_l")
    k.e(f"""
    global_load_dword v14, v13, s[{PDBG}:{PDBG+1}] sc1
    s_waitcnt vmcnt(0)
    v_readfirstlane_b32 s{SEP}, v14
    s_cmp_lg_u32 s{SEP}, 0
    s_cbranch_scc1 {name}_ep_done
    s_sleep 2
    s_sub_u32 s3, s3, 1
    s_cbranch_scc0 {name}_ep_l
    s_mov_b32 s{SEP}, 1
    v_mov_b32 v14, 1
    """)
    k.label(f"{name}_ep_done")
    k.e(f"ds_write_b32 v{VSY}, v14 offset:{EPO}\ns_waitcnt vmcnt(0)")
    k.stamp(2)
    A = 80
    for r in range(8): k.e(f"v_mov_b32 v{A+r}, 0")
    for i in range(32):
        o = i & 1
        k.e(f"""
        v_dot2_f32_bf16 v{A+o}, v{XD+i}, s{SONE}, v{A+o}
        v_dot2_f32_bf16 v{A+2+o}, v{XD+i}, v{XD+i}, v{A+2+o}
        v_dot2_f32_bf16 v{A+4+o}, v{XD+i}, v{WD+i}, v{A+4+o}
        v_dot2_f32_bf16 v{A+6+o}, v{WD+i}, s{SONE}, v{A+6+o}
        """)
    for r in range(0, 8, 2): k.e(f"v_add_f32 v{A+r}, v{A+r}, v{A+r+1}")
    for dp in ('quad_perm:[1,0,3,2]', 'quad_perm:[2,3,0,1]', 'row_half_mirror'):
        for r in range(0, 8, 2): k.e(f"v_add_f32_dpp v{A+r}, v{A+r}, v{A+r} {dp} row_mask:0xf bank_mask:0xf")
    ln_final(k, A, A + 2, 16, 17, 18)
    k.e(f"""
    v_fma_f32 v18, v16, v{A+6}, v{A+4}
    v_mul_f32 v18, v18, v17
    v_lshrrev_b32 v19, 16, v19
    v_and_b32 v16, 0xffff0000, v16
    v_or_b32 v20, v16, v19
    v_mov_b32 v21, s{SEP}
    v_ashrrev_i32 v19, 31, v18
    v_or_b32 v19, 0x80000000, v19
    v_xor_b32 v18, v18, v19
    v_and_b32 v18, 0xfffff800, v18
    v_sub_u32 v19, 2047, v9
    v_or_b32 v18, v18, v19
    v_lshl_add_u32 v12, v10, 2, v{VSY}
    ds_write_b32 v12, v18 offset:{KX}
    v_lshlrev_b32 v9, 3, v9
    s_mov_b32 s34, {KEYB}
    s_mov_b32 s36, 0x01010101
    s_mov_b32 s37, 0x01010101
    s_waitcnt lgkmcnt(0)
    ds_read_b128 v[24:27], v{VSY} offset:{KX}
    ds_read_b128 v[28:31], v{VSY} offset:{KX+16}
    s_mov_b64 exec, s[36:37]
    buffer_store_dwordx2 v[20:21], v9, s[{WS}:{WS+3}], s34 offen sc1
    v_mov_b32 v22, 0
    s_lshl_b32 s33, s{SRB}, 3
    s_add_u32 s33, s33, s{SC}
    s_lshr_b32 s34, s33, 6
    s_lshl_b32 s34, s34, 12
    s_and_b32 s33, s33, 63
    s_lshl_b32 s33, s33, 4
    s_add_u32 s34, s34, s33
    s_add_u32 s34, s34, {KEYA}
    v_mov_b32 v19, s{SEP}
    s_waitcnt lgkmcnt(0)
    """)
    for i in range(8): k.e(f"v_cmp_gt_u32 vcc, v{24+i}, v18\nv_addc_co_u32 v22, vcc, 0, v22, vcc")
    k.e(f"""
    v_lshrrev_b32 v23, 1, v22
    v_lshlrev_b32 v23, 10, v23
    v_and_b32 v22, 1, v22
    v_lshl_add_u32 v23, v22, 3, v23
    buffer_store_dwordx2 v[18:19], v23, s[{WS}:{WS+3}], s34 offen sc1
    s_mov_b64 exec, -1
    """)
    k.stamp(3)
    k.e(f"s_branch {name}_sv")
    k.label(f"{name}_fw")
    k.e(f"""
    s_waitcnt lgkmcnt(0)
    s_barrier
    s_mov_b32 s{WS}, s{PWS}
    s_mov_b32 s{WS+1}, s{PWS+1}
    """)
    get_epoch(k, 12, 2)
    k.e(f"s_cmp_ge_u32 s2, {NFFN}\ns_cbranch_scc1 {name}_sv\nv_lshlrev_b32 v2, 4, v0\ns_mov_b32 s3, 0x4000\ns_sleep 20")
    for j in range(1, 8): k.e(f"s_mov_b32 s{44+2*j}, 0x{0x01010101 << j:08x}\ns_mov_b32 s{45+2*j}, 0x{0x01010101 << j:08x}")
    KD = 16
    k.label(f"{name}_sweep")
    for t in range(4):
        k.e(f"s_mov_b32 s34, {KEYA+t*4096}")
        for u in range(4): k.e(f"buffer_load_dwordx4 {vr(KD+16*t+4*u,4)}, v2, s[{WS}:{WS+3}], s34 offen offset:{u*1024} sc1")
    k.e(f"v_mov_b32 v4, s{SEP}\nv_mov_b32 v5, s{SEP}\ns_waitcnt vmcnt(0)")
    for i in range(16):
        k.e(f"v_min3_u32 v4, v4, v{KD+4*i+1}, v{KD+4*i+3}\nv_max3_u32 v5, v5, v{KD+4*i+1}, v{KD+4*i+3}")
    k.e(f"""
    v_cmp_ne_u32 vcc, v4, v5
    s_cbranch_vccz {name}_swept
    s_sleep 4
    s_sub_u32 s3, s3, 1
    s_cbranch_scc0 {name}_sweep
    """)
    k.label(f"{name}_swept")
    k.stamp(2)
    def sort8(cur, oth):
        for d in (4, 2, 1):
            for i in range(8):
                if i & d: continue
                k.e(f"v_max_u32 v{oth[i]}, v{cur[i]}, v{cur[i+d]}\nv_min_u32 v{oth[i+d]}, v{cur[i]}, v{cur[i+d]}")
            cur, oth = oth, cur
        return cur, oth
    Lt = lambda t: [KD + 16 * t + 2 * i for i in range(8)]
    Tt = lambda t: [KD + 16 * t + 2 * i + 1 for i in range(8)]
    def mrg(a, b, dst, tmp):
        for i in range(8): k.e(f"v_max_u32 v{dst[i]}, v{a[i]}, v{b[7-i]}")
        return sort8(dst, tmp)
    c0, _ = mrg(Lt(0), Lt(1), Tt(0), Tt(1))
    c1, _ = mrg(Lt(2), Lt(3), Tt(2), Tt(3))
    cur, oth = mrg(c0, c1, Lt(0), Lt(1))
    for lv, dp in enumerate(('quad_perm:[1,0,3,2]', 'quad_perm:[2,3,0,1]', 'row_half_mirror', 'row_mirror')):
        for i in range(8): k.e(f"v_max_u32_dpp v{oth[i]}, v{cur[7-i]}, v{cur[i]} {dp} row_mask:0xf bank_mask:0xf")
        cur, oth = sort8(oth, cur)
    for lv, sw in enumerate(('v_permlane16_swap_b32', 'v_permlane32_swap_b32')):
        t2 = Lt(2)
        for i in range(8): k.e(f"v_mov_b32 v{oth[i]}, v{cur[i]}")
        for i in range(8): k.e(f"{sw} v{cur[i]}, v{oth[i]}")
        for i in range(8): k.e(f"v_max_u32 v{t2[i]}, v{cur[i]}, v{oth[7-i]}")
        if lv == 0:
            c2, _ = sort8(t2, cur); assert c2 == cur
        else: cur = t2
    for j in range(1, 8): k.e(f"v_cndmask_b32_e64 v{cur[0]}, v{cur[0]}, v{cur[j]}, {sr(44+2*j,2)}")
    KEY = cur[0]
    k.e(f"""
    v_and_b32 v3, 7, v0
    v_lshl_add_u32 v4, v3, 2, v{VSY}
    s_mov_b64 exec, 0xff
    ds_write_b32 v4, v{KEY} offset:{TOP}
    v_mov_b32 v5, 1
    ds_write_b32 v{VSY}, v5 offset:{FT}
    s_cmp_lg_u32 s2, 0
    s_cbranch_scc1 {name}_nosel
    v_and_b32 v10, 2047, v{KEY}
    v_sub_u32 v10, 2047, v10
    v_ashrrev_i32 v11, 31, v{KEY}
    v_not_b32 v11, v11
    v_or_b32 v11, 0x80000000, v11
    v_xor_b32 v11, v11, v{KEY}
    v_cvt_pk_bf16_f32 v11, v11, v11
    v_and_b32 v11, 0xffff0000, v11
    v_mul_f32 v11, {f32(-LOG2E)}, v11
    v_exp_f32 v11, v11
    v_lshlrev_b32 v13, 3, v0
    v_add_f32 v11, 1.0, v11
    v_rcp_f32 v11, v11
    s_mov_b32 s33, {SELG}
    v_cvt_pk_bf16_f32 v11, v11, v11
    v_and_b32 v11, 0xffff0000, v11
    v_or_b32 v10, v10, v11
    v_mov_b32 v11, s{SEP}
    buffer_store_dwordx2 v[10:11], v13, s[{WS}:{WS+3}], s33 offen sc1
    """)
    k.label(f"{name}_nosel")
    k.e("s_mov_b64 exec, -1")
    k.stamp(3)

def service(k, name):
    SQ_ = 33
    SX_, SG_, SU_, SD_, SWO_ = 44, 48, 52, 56, 60
    k.label(f"{name}_sv")
    k.e(f"s_sub_u32 s{SQ_}, s{SW}, 4\ns_mov_b32 s32, 0")
    srd(k, SWO_, PWO, '0x80000')
    k.e(f"""
    v_lshrrev_b32 v2, 3, v0
    v_and_b32 v3, 7, v0
    v_bfe_u32 v4, v0, 4, 1
    v_lshlrev_b32 v4, 1, v4
    v_xor_b32 v3, v3, v4
    v_lshlrev_b32 v3, 4, v3
    v_lshl_add_u32 v9, v2, 10, v3
    s_lshl_b32 s35, s{SC}, 7
    s_lshl_b32 s36, s{SQ_}, 17
    s_add_u32 s35, s35, s36
    v_add_u32 v9, s35, v9
    s_lshl_b32 s37, s{SQ_}, 14
    s_add_u32 s34, s37, {RING}
    s_lshl_b32 s35, s{SQ_}, 2
    v_add_u32 v15, s35, v{VSY}
    s_cmp_lt_u32 s2, {NFFN}
    s_cbranch_scc1 {name}_ffn
    """)
    def wo_dma():
        for i in range(16):
            k.e(f"s_add_u32 m0, s37, {i*1024}\ns_mov_b32 s35, {i*8192}\nbuffer_load_dwordx4 v9, s[{SWO_}:{SWO_+3}], s35 offen lds")
    wait_lds(k, CONS, 4, 14, 16, 2)
    k.stamp(6)
    wo_dma()
    k.label(f"{name}_sv2")
    k.e(f"s_waitcnt vmcnt(0)\nv_mov_b32 v5, 1\nds_write_b32 v15, v5 offset:{WOL}")
    k.stamp(7)
    k.e(f"v_lshlrev_b32 v2, 3, v0\ns_mov_b32 s35, {SELG}\ns_mov_b64 exec, 0xff\ns_mov_b32 s3, 0x8000")
    k.label(f"{name}_sel_l")
    k.e(f"""
    buffer_load_dwordx2 v[4:5], v2, s[{WS}:{WS+3}], s35 offen sc1
    s_waitcnt vmcnt(0)
    v_cmp_ne_u32 vcc, s{SEP}, v5
    s_cbranch_vccz {name}_sel_d
    s_sleep 4
    s_sub_u32 s3, s3, 1
    s_cbranch_scc0 {name}_sel_l
    """)
    k.label(f"{name}_sel_d")
    k.e(f"""
    v_and_b32 v5, 2047, v4
    v_lshl_add_u32 v6, v0, 2, v{VSY}
    ds_write_b32 v6, v5 offset:{SELL}
    v_lshrrev_b32 v6, 6, v5
    v_cmp_eq_u32 vcc, s{SRB}, v6
    s_mov_b64 exec, -1
    s_and_b32 s36, vcc_lo, 0xff
    s_lshr_b32 s35, s36, s{SQ_}
    s_and_b32 s35, s35, 0x11
    s_cmp_eq_u32 s35, 0
    s_cbranch_scc1 {name}_ydone
    """)
    k.stamp(8)
    k.e(f"""
    v_lshlrev_b32 v2, 2, v0
    s_lshr_b32 s30, s{SC}, 1
    s_lshl_b32 s30, s30, 8
    s_add_u32 s30, s30, {YF}
    s_bfm_b64 exec, {NFFN}, 0
    """)
    poll(k, 2, 's30', 3, sleep=2)
    k.e(f"""
    s_mov_b64 exec, -1
    v_lshrrev_b32 v2, 4, v0
    v_lshlrev_b32 v2, 14, v2
    v_and_b32 v3, 15, v0
    v_lshl_add_u32 v2, v3, 4, v2
    v_lshl_add_u32 v3, v3, 4, v{VSY}
    """)
    for z in range(2):
        L = uid(k, 'yt')
        k.e(f"""
        s_bitcmp0_b32 s35, {4*z}
        s_cbranch_scc1 {L}
        s_add_u32 s38, s{SQ_}, {4*z}
        v_readlane_b32 s31, v4, s38
        s_lshl_b32 s30, s38, 11
        s_lshl_b32 s39, s{SC}, 8
        s_add_u32 s30, s30, s39
        s_add_u32 s30, s30, {YP}
        s_and_b32 s31, s31, 0xffff0000
        s_lshl_b32 s38, s38, 8
        v_add_u32 v6, s38, v3
        """)
        for p in range(14):
            k.e(f"buffer_load_dwordx4 {vr(16+4*p,4)}, v2, s[{WS}:{WS+3}], s30 offen sc1\ns_add_u32 s30, s30, 65536")
        for p in range(1, 14):
            k.e(f"s_waitcnt vmcnt({13-p})")
            for r in range(4): k.e(f"v_add_f32 v{16+r}, v{16+r}, v{16+4*p+r}")
        for sw in ('v_permlane16_swap_b32', 'v_permlane32_swap_b32'):
            for r in range(4): k.e(f"v_mov_b32 v{20+r}, v{16+r}")
            for r in range(4): k.e(f"{sw} v{16+r}, v{20+r}")
            for r in range(4): k.e(f"v_add_f32 v{16+r}, v{16+r}, v{20+r}")
        for r in range(4): k.e(f"v_mul_f32 v{16+r}, s31, v{16+r}")
        k.e(f"ds_write_b128 v6, v[16:19] offset:{YL}")
        k.label(L)
    k.label(f"{name}_ydone")
    k.e(f"""
    s_lshl_b32 s36, s36, 1
    s_or_b32 s36, s36, 1
    v_mov_b32 v5, s36
    ds_write_b32 v15, v5 offset:{YD}
    """)
    k.stamp(9)
    k.e(f"s_branch {name}_op")
    k.label(f"{name}_ffn")
    srd(k, SX_, PX, '0x200000'); srd(k, SG_, PWG, '0x1c0000'); srd(k, SU_, PWU, '0x1c0000'); srd(k, SD_, PWD, '0x1c0000')
    k.e(f"""
    v_and_b32 v2, 15, v0
    v_lshrrev_b32 v6, 2, v0
    v_and_b32 v7, 3, v0
    v_lshrrev_b32 v8, 5, v0
    v_lshlrev_b32 v8, 1, v8
    v_xor_b32 v7, v7, v8
    v_mul_u32_u24 v6, 3584, v6
    v_lshl_add_u32 v6, v7, 4, v6
    s_mul_i32 s35, s{SQ_}, {128*3584}
    s_lshl_b32 s36, s2, 6
    s_add_u32 s35, s35, s36
    v_add_u32 v6, s35, v6
    v_lshrrev_b32 v7, 4, v0
    v_lshlrev_b32 v8, 1, v7
    v_xor_b32 v8, v2, v8
    v_lshlrev_b32 v8, 4, v8
    v_lshl_add_u32 v7, v7, 10, v8
    s_lshl_b32 s35, s2, 15
    s_lshl_b32 s36, s{SQ_}, 8
    s_add_u32 s35, s35, s36
    v_add_u32 v7, s35, v7
    v_xor_b32 v8, 128, v7
    """)
    XB = 48
    k.e("s_mov_b32 s10, 0xff00ff00\ns_mov_b32 s11, 0xff00ff00\ns_mov_b64 exec, s[10:11]")
    for r in range(16): k.e(f"v_mov_b32 v{XB+r}, 0x3f803f80")
    k.e("s_mov_b64 exec, -1")
    k.e(f"""
    v_lshrrev_b32 v16, 4, v0
    v_bfe_u32 v17, v0, 2, 2
    v_and_b32 v18, 3, v0
    v_lshl_add_u32 v24, v16, 3, v17
    v_lshlrev_b32 v24, 6, v24
    v_lshl_add_u32 v24, v18, 3, v24
    v_and_b32 v20, 1, v16
    v_lshl_add_u32 v24, v20, 5, v24
    v_add_u32 v24, s34, v24
    v_xor_b32 v25, 32, v24
    v_lshl_add_u32 v26, v16, 2, v17
    v_and_b32 v22, 7, v26
    v_lshlrev_b32 v26, 8, v26
    v_lshl_add_u32 v26, v22, 5, v26
    v_lshl_add_u32 v26, v18, 3, v26
    v_add_u32 v26, s34, v26
    """)
    wait_lds(k, CONS, 4, 14, 16, 2)
    k.stamp(6)
    for i in range(8):
        k.e(f"""
        s_mov_b32 s35, {i*16*3584}
        s_add_u32 m0, s34, {i*1024}
        buffer_load_dwordx4 v6, s[{SG_}:{SG_+3}], s35 offen lds
        s_add_u32 m0, s34, {8192+i*1024}
        buffer_load_dwordx4 v6, s[{SU_}:{SU_+3}], s35 offen lds
        """)
    wait_lds(k, FT, 1, 1, 16, 2)
    k.e(f"""
    v_and_b32 v10, 7, v0
    v_lshl_add_u32 v10, v10, 2, v{VSY}
    ds_read_b32 v10, v10 offset:{TOP}
    v_lshrrev_b32 v12, 4, v0
    v_lshlrev_b32 v12, 4, v12
    s_lshl_b32 s35, s{SQ_}, 8
    s_mov_b32 s36, {KEYB}
    s_waitcnt lgkmcnt(0)
    v_and_b32 v10, 2047, v10
    v_sub_u32 v10, 2047, v10
    v_lshlrev_b32 v11, 3, v10
    v_lshl_add_u32 v12, v10, 10, v12
    s_not_b64 exec, s[10:11]
    """)
    for s in range(4): k.e(f"buffer_load_dwordx4 {vr(XB+4*s,4)}, v12, s[{SX_}:{SX_+3}], s35 offen offset:{64*s}")
    k.e(f"""
    s_mov_b64 exec, -1
    buffer_load_dwordx2 v[28:29], v11, s[{WS}:{WS+3}], s36 offen sc1
    s_waitcnt vmcnt(5)
    """)
    AF, ACC, DF = 64, 128, 192
    for s in range(4):
        for mat in range(2):
            for hf in range(2):
                d = AF + 4 * (s * 4 + mat * 2 + hf); off = mat * 8192 + s * 2048
                k.e(f"ds_read_b64_tr_b16 {vr(d,2)}, v{24+hf} offset:{off}\nds_read_b64_tr_b16 {vr(d+2,2)}, v{24+hf} offset:{off+256}")
        k.e("s_waitcnt lgkmcnt(0)")
    for i in range(8):
        k.e(f"s_mov_b32 s35, {i*4096}\ns_add_u32 m0, s34, {i*1024}\nbuffer_load_dwordx4 v{7+(i&1)}, s[{SD_}:{SD_+3}], s35 offen lds")
    k.e("s_waitcnt vmcnt(8)")
    k.stamp(7)
    for s in range(4):
        for q in range(4):
            k.e(f"v_mfma_f32_16x16x32_bf16 {vr(ACC+4*q,4)}, {vr(AF+4*(s*4+q),4)}, {vr(XB+4*s,4)}, {'0' if s == 0 else vr(ACC+4*q,4)}")
    k.e(f"""
    v_lshlrev_b32 v16, 4, v0
    v_add_u32 v17, s34, v16
    v_add_u32 v16, {RING}, v16
    """)
    for q in range(4): k.e(f"ds_write_b128 v17, {vr(ACC+4*q,4)} offset:{8192+1024*q}")
    k.e(f"v_mov_b32 v5, 1\nds_write_b32 v15, v5 offset:{FR}")
    wo_dma()
    k.e("s_mov_b32 s3, 0x8000")
    L = uid(k, 'kb'); D = L + 'd'
    k.label(L)
    k.e(f"""
    v_cmp_ne_u32 vcc, s{SEP}, v29
    s_cbranch_vccz {D}
    buffer_load_dwordx2 v[28:29], v11, s[{WS}:{WS+3}], s36 offen sc1
    s_waitcnt vmcnt(0)
    s_sub_u32 s3, s3, 1
    s_cbranch_scc0 {L}
    """)
    k.label(D)
    k.e(f"""
    v_and_b32 v14, 0xffff0000, v28
    v_lshlrev_b32 v28, 16, v28
    v_rcp_f32 v28, v28
    s_waitcnt vmcnt(16)
    """)
    for Tn in range(8):
        d = DF + 4 * Tn
        k.e(f"v_xor_b32 v22, {Tn*32}, v26\nds_read_b64_tr_b16 {vr(d,2)}, v22\nds_read_b64_tr_b16 {vr(d+2,2)}, v22 offset:4096")
        if Tn == 3: k.e("s_waitcnt lgkmcnt(0)")
    wait_lds(k, FR, 4, 1, 20, 0)
    RD = 64
    for w in range(4):
        for q in range(4): k.e(f"ds_read_b128 {vr(RD+16*w+4*q,4)}, v16 offset:{16384*w+8192+1024*q}")
        if w == 1: k.e("s_waitcnt lgkmcnt(0)")
    for r in range(16): k.e(f"v_add_f32 v{RD+r}, v{RD+r}, v{RD+16+r}")
    k.e(f"s_waitcnt lgkmcnt(0)\nds_write_b32 v15, v5 offset:{FS}")
    for r in range(16): k.e(f"v_add_f32 v{RD+32+r}, v{RD+32+r}, v{RD+48+r}")
    for r in range(16): k.e(f"v_add_f32 v{RD+r}, v{RD+r}, v{RD+32+r}")
    k.e(f"v_mul_f32 v12, {f32(-LOG2E)}, v28\nv_mul_f32 v13, v28, v28")
    for r in range(16): k.e(f"v_fmac_f32_dpp v{RD+r}, v{RD+r}, v14 row_ror:8 row_mask:0xf bank_mask:0xf")
    EE = RD + 16
    for r in range(8): k.e(f"v_mul_f32 v{EE+r}, v12, v{RD+r}")
    for r in range(8): k.e(f"v_exp_f32 v{EE+r}, v{EE+r}")
    for r in range(8): k.e(f"v_mul_f32 v{RD+r}, v{RD+r}, v{RD+8+r}")
    for r in range(8): k.e(f"v_add_f32 v{EE+r}, 1.0, v{EE+r}")
    for r in range(8): k.e(f"v_rcp_f32 v{EE+r}, v{EE+r}")
    for r in range(8): k.e(f"v_mul_f32 v{RD+r}, v{RD+r}, v13")
    for r in range(8): k.e(f"v_mul_f32 v{RD+r}, v{RD+r}, v{EE+r}")
    for i in range(4): k.e(f"v_cvt_pk_bf16_f32 v{XB+i}, v{RD+2*i}, v{RD+2*i+1}")
    for Tn in range(8):
        k.e(f"v_mfma_f32_16x16x32_bf16 {vr(RD+16+4*Tn,4)}, {vr(DF+4*Tn,4)}, {vr(XB,4)}, 0")
    k.e(f"""
    v_lshrrev_b32 v16, 4, v0
    v_lshlrev_b32 v16, 4, v16
    v_lshl_add_u32 v16, v2, 11, v16
    s_lshl_b32 s35, s2, 14
    s_lshl_b32 s36, s{SQ_}, 9
    s_add_u32 s35, s35, s36
    s_add_u32 s35, s35, {YP}
    s_not_b64 exec, s[10:11]
    """)
    for Tn in range(8):
        k.e(f"buffer_store_dwordx4 {vr(RD+16+4*Tn,4)}, v16, s[{WS}:{WS+3}], s35 offen offset:{64*Tn} sc1")
    k.e(f"""
    s_lshl_b32 s35, s{SQ_}, 8
    s_lshl_b32 s36, s2, 2
    s_add_u32 s35, s35, s36
    s_add_u32 s35, s35, {YF}
    s_mov_b64 exec, 1
    v_mov_b32 v16, 0
    v_mov_b32 v17, s{SEP}
    s_waitcnt vmcnt(0)
    buffer_store_dword v17, v16, s[{WS}:{WS+3}], s35 offen sc1
    s_mov_b64 exec, -1
    """)
    k.stamp(5)
    wait_lds(k, FS, 4, 1, 20, 0)
    k.e(f"s_branch {name}_sv2")

def gen(k, name):
    k.SB0 = 76
    prologue(k, name)
    loader(k, name)
    kf_waves(k, name)
    service(k, name)
    emit_slow = cwave_qkv(k, name)
    slow_parts = attention(k, name)
    k.e(f"s_mov_b32 s32, 1\ns_mov_b32 s33, s{SW}")
    oproj(k, name)
    emit_slow()
    slow_parts()
    return kd(name, 256)
```

```python
import sys
sys.path.insert(0, 'gen')
from asmlib import *
import fz
P = 'recurrent_scan__sliding_block__moe_arch_mod__prompt'
def build(prof=False):
    hdr = open(f'cdna_kernels/{P}.s.ref').read().split('; Override launch')[0]
    body = K(); body.prof = prof
    body.raw('.amdgcn_target "amdgcn-amd-amdhsa--gfx950"\n.text\n.p2align 8\ntext_start:')
    kdt = fz.gen(body, P + '_kernel')
    body.raw('text_end:')
    return hdr + f'; @launch grid=(256,1,1) block=(512,1,1) lds={fz.LDS_BYTES}\n' + body.text() + '.section .rodata,"a"\n' + kdt
if __name__ == '__main__':
    out = sys.argv[1]
    open(out, 'w').write(build(len(sys.argv) > 2))
```

```python
import re

REG_RE = re.compile(r'^(-|\|)?([vsa])(\d+)\|?$')
RNG_RE = re.compile(r'^(-|\|)?([vsa])\[(\d+):(\d+)\]\|?$')
TRANS = ('v_exp_', 'v_log_', 'v_rcp_', 'v_rsq_', 'v_sqrt_', 'v_sin_', 'v_cos_')
DPPK = ('quad_perm', 'row_shl', 'row_shr', 'row_ror', 'wave_', 'row_mirror', 'row_half_mirror', 'row_bcast', 'row_newbcast')

def regs_of(tok):
    tok = tok.strip()
    if tok.startswith('neg(') or tok.startswith('abs('):
        tok = tok[4:-1]
    m = REG_RE.match(tok)
    if m: return {(m.group(2), int(m.group(3)))}
    m = RNG_RE.match(tok)
    if m: return {(m.group(2), i) for i in range(int(m.group(3)), int(m.group(4)) + 1)}
    if tok == 'vcc': return {('s', 106), ('s', 107)}
    if tok == 'vcc_lo': return {('s', 106)}
    if tok == 'vcc_hi': return {('s', 107)}
    if tok == 'exec': return {('x', 0), ('x', 1)}
    if tok == 'exec_lo': return {('x', 0)}
    if tok == 'exec_hi': return {('x', 1)}
    if tok == 'm0': return {('m', 0)}
    return set()

def split_ops(s):
    out, cur, d = [], '', 0
    for ch in s:
        if ch in '[(': d += 1
        if ch in '])': d -= 1
        if ch == ',' and d == 0: out.append(cur); cur = ''
        else: cur += ch
    if cur.strip(): out.append(cur)
    return [o.strip() for o in out]

class I:
    pass

def parse(text):
    t = text.split(';')[0].strip()
    i = I(); i.text = text
    mn, _, rest = t.partition(' ')
    i.mn = mn
    ops = split_ops(rest)
    mods = ''
    if ops:
        last = ops[-1].split(None, 1)
        if last:
            ops[-1] = last[0]
            mods = last[1] if len(last) > 1 else ''
    i.ops, i.mods = ops, mods
    R = [regs_of(o) for o in ops]
    U = lambda xs: set().union(*xs) if xs else set()
    i.w, i.r = set(), set()
    i.kind = 'other'; i.passes = 0; i.A = i.B = i.C = set(); i.ws = 1
    i.dpp = any(k in mods for k in DPPK)
    i.trans = mn.startswith(TRANS)
    i.wide_store = set()
    if mn == 's_nop':
        i.ws = int(ops[0], 0) + 1; i.kind = 'nop'
    elif mn.startswith('v_mfma'):
        i.kind = 'mfma'; i.w = R[0]; i.A, i.B, i.C = R[1], R[2], R[3]; i.r = U(R[1:])
        i.passes = 8 if '32x32' in mn else 4
    elif mn.startswith('v_'):
        i.kind = 'valu'
        if mn.startswith('v_cmpx'):
            i.w = {('x', 0), ('x', 1)} | R[0]; i.r = U(R[1:])
        elif mn.startswith(('v_add_co', 'v_sub_co', 'v_subrev_co', 'v_addc_co', 'v_subb_co', 'v_subbrev_co', 'v_div_scale', 'v_mad_u64', 'v_mad_i64')):
            i.w = R[0] | R[1]; i.r = U(R[2:])
        elif mn.startswith(('v_permlane16_swap', 'v_permlane32_swap', 'v_swap')):
            i.w = R[0] | R[1]; i.r = R[0] | R[1]
        elif mn.startswith(('v_fmac', 'v_dot2c', 'v_pk_fmac', 'v_mac', 'v_writelane')):
            i.w = R[0]; i.r = U(R)
        elif mn == 'v_nop':
            pass
        else:
            i.w = R[0]; i.r = U(R[1:])
            if i.dpp: i.r |= R[0]
    elif mn.startswith('ds_'):
        i.kind = 'ds'
        if mn.startswith(('ds_read', 'ds_bpermute', 'ds_permute', 'ds_swizzle')) or '_rtn' in mn:
            i.w = R[0]; i.r = U(R[1:])
        else: i.r = U(R)
    elif mn.startswith(('buffer_', 'global_')):
        i.kind = 'vmem'
        lds = ' lds' in (' ' + mods) or '_lds_' in mn
        i.lds = lds
        if lds: i.r = U(R) | {('m', 0)}
        elif '_load' in mn: i.w = R[0]; i.r = U(R[1:])
        elif 'atomic' in mn and ('sc0' in mods):
            i.w = R[0]; i.r = U(R)
        else:
            i.r = U(R)
            if mn.endswith(('x3', 'x4')):
                i.wide_store = R[0] if mn.startswith('buffer_') else R[1]
    elif mn.startswith('s_'):
        i.kind = 'salu'
        if mn.startswith(('s_cmp', 's_waitcnt', 's_barrier', 's_branch', 's_cbranch', 's_endpgm', 's_setprio', 's_sleep', 's_bitcmp', 's_setpc', 's_sethalt')):
            i.r = U(R)
        else:
            i.w = R[0] if R else set(); i.r = U(R[1:])
            if 'saveexec' in mn: i.w |= {('x', 0), ('x', 1)}
            if mn.startswith(('s_load', 's_buffer_load')): i.kind = 'smem'
    return i

def need(p, c):
    n = 0
    vw = {r for r in p.w if r[0] in 'va'}
    sw = {r for r in p.w if r[0] == 's'}
    xw = {r for r in p.w if r[0] == 'x'}
    if c is None:
        if p.kind == 'mfma': n = max(n, p.passes + 4)
        if p.kind == 'valu':
            if vw: n = max(n, 3 if p.mn.startswith('v_dot') else 2)
            if sw or xw: n = max(n, 5)
        if p.wide_store: n = max(n, 2)
        if p.kind == 'salu' and ('m', 0) in p.w: n = max(n, 1)
        return n
    if p.kind == 'mfma':
        if c.kind == 'mfma':
            if p.w & (c.A | c.B): n = max(n, p.passes + 4)
            if p.w & c.C:
                if not (p.w == c.C and p.passes == c.passes): n = max(n, p.passes + 2)
            elif p.w & c.w: n = max(n, p.passes + 4)
        elif c.kind in ('valu', 'vmem', 'ds'):
            if p.w & (c.r | c.w): n = max(n, p.passes + 4)
            if p.C & c.w: n = max(n, p.passes - 1)
    if p.kind == 'valu':
        if c.kind == 'mfma':
            if vw & c.r: n = max(n, 2)
            if xw: n = max(n, 4)
        if c.kind == 'vmem' and sw & c.r: n = max(n, 5)
        if c.kind == 'valu':
            if sw & c.r:
                n = max(n, 4 if c.mn.startswith(('v_readlane', 'v_writelane')) else 2)
            if vw & c.r:
                if c.dpp or c.mn.startswith('v_permlane'): n = max(n, 2)
                if c.mn.startswith(('v_readlane', 'v_readfirstlane')): n = max(n, 1)
                if p.trans and not c.trans: n = max(n, 1)
                if 'op_sel' in p.mods or 'sdwa' in p.mn: n = max(n, 1)
            if p.mn.startswith('v_dot') and (vw & (c.r | c.w)):
                if not (c.mn == p.mn and c.ops and regs_of(c.ops[-1]) == vw and not (vw & (regs_of(c.ops[1]) | regs_of(c.ops[2])))):
                    n = max(n, 3)
            if xw:
                if c.dpp: n = max(n, 5)
                if c.mn.startswith(('v_readlane', 'v_readfirstlane', 'v_writelane', 'v_permlane')): n = max(n, 4)
                if xw & c.r: n = max(n, 2)
        if p.mn.startswith('v_dot') and c.kind in ('mfma', 'vmem', 'ds') and (vw & c.r): n = max(n, 3)
        if p.trans and c.kind in ('vmem', 'ds') and (vw & c.r): n = max(n, 1)
    if p.wide_store and (p.wide_store & c.w): n = max(n, 2)
    if p.kind == 'salu' and ('m', 0) in p.w and ('m', 0) in c.r and c.kind in ('vmem', 'ds'): n = max(n, 1)
    return n

class K:
    def __init__(self):
        self.lines = []
        self.hist = []
        self.nops = 0
    def raw(self, s): self.lines.append(s)
    def c(self, s): self.lines.append('    ; ' + s)
    def _pad(self, c):
        dist = 0; req = 0
        for p in reversed(self.hist):
            req = max(req, need(p, c) - dist)
            dist += p.ws
            if dist > 14: break
        while req > 0:
            n = min(req, 8)
            self.lines.append('    s_nop %d' % (n - 1)); self.hist.append(parse('s_nop %d' % (n - 1)))
            self.nops += 1
            req -= n
    def e(self, text):
        for t in text.strip().split('\n'):
            t = t.strip()
            if not t or t.startswith(';'): continue
            i = parse(t)
            if i.mn.startswith(('s_branch', 's_cbranch', 's_setpc')): self._pad(None)
            else: self._pad(i)
            self.lines.append('    ' + t); self.hist.append(i)
            if len(self.hist) > 40: self.hist = self.hist[-20:]
    def label(self, name, pad=True):
        if pad: self._pad(None)
        self.lines.append(name + ':')
    def br(self, text):
        i = parse(text); self.lines.append('    ' + text); self.hist.append(i)
    def entry(self, name):
        self.lines.append(name + ':'); self.hist = []
        self.e("s_nop 7\ns_nop 3")
    prof = False
    SB0 = 84
    pset = 'm'
    def stamp(self, i, real=False, st='m'):
        if self.prof and (st == self.pset or i in (0, 1, 11)): self.e(f"{'s_memrealtime' if real else 's_memtime'} s[{self.SB0+2*i}:{self.SB0+1+2*i}]")
    def stamp_flush12(self, base, swave, srd):
        if not self.prof: return
        self.e("s_mov_b64 exec, 1\ns_waitcnt lgkmcnt(0)")
        for i in range(12): self.e(f"v_mov_b32 v{8+i}, s{self.SB0+2*i}")
        self.e(f"""s_lshl_b32 s100, s2, 3
        s_add_u32 s100, s100, s{swave}
        s_lshl_b32 s100, s100, 6
        s_add_u32 s100, s100, {base}
        v_mov_b32 v7, 0
        buffer_store_dwordx4 v[8:11], v7, s[{srd}:{srd+3}], s100 offen
        buffer_store_dwordx4 v[12:15], v7, s[{srd}:{srd+3}], s100 offen offset:16
        buffer_store_dwordx4 v[16:19], v7, s[{srd}:{srd+3}], s100 offen offset:32""")
    def stamp_flush(self, base, swave, wsp=10):
        if not self.prof: return
        self.e("s_mov_b64 exec, 1\ns_waitcnt lgkmcnt(0)")
        for i in range(8): self.e(f"v_mov_b32 v{8+i}, s{84+2*i}")
        self.e(f"""s_lshl_b32 s100, s2, 3
        s_add_u32 s100, s100, s{swave}
        s_lshl_b32 s100, s100, 5
        s_add_u32 s100, s100, {base}
        v_mov_b32 v7, 0
        buffer_store_dwordx4 v[8:11], v7, s[20:23], s100 offen
        buffer_store_dwordx4 v[12:15], v7, s[20:23], s100 offen offset:16""")
    def text(self): return '\n'.join(self.lines) + '\n'

def vr(b, n=1): return 'v%d' % b if n == 1 else 'v[%d:%d]' % (b, b + n - 1)
def sr(b, n=1): return 's%d' % b if n == 1 else 's[%d:%d]' % (b, b + n - 1)
def ar(b, n=1): return 'a%d' % b if n == 1 else 'a[%d:%d]' % (b, b + n - 1)

def kd(name, nv, accum=None, ns=102):
    nv8 = (nv + 7) // 8 * 8
    acc = accum if accum is not None else (min(nv8, 256) + 3) // 4 * 4
    return f""".p2align 6
.amdhsa_kernel {name}
  .amdhsa_next_free_vgpr {nv8}
  .amdhsa_next_free_sgpr {ns}
  .amdhsa_accum_offset {acc}
  .amdhsa_group_segment_fixed_size 0
  .amdhsa_kernarg_size 88
  .amdhsa_user_sgpr_count 2
  .amdhsa_user_sgpr_kernarg_segment_ptr 1
  .amdhsa_system_sgpr_workgroup_id_x 1
.end_amdhsa_kernel
"""


class Cnt:
    def __init__(self, k, name, cap):
        self.k, self.name, self.cap = k, name, cap; self.n = 0; self.tags = {}
    def op(self, text, tag=None):
        for t in text.strip().split('\n'):
            t = t.strip()
            if not t: continue
            self.k.e(t)
            mn = t.split()[0]
            if (self.name == 'lgkmcnt' and mn.startswith('ds_')) or (self.name == 'vmcnt' and mn.startswith(('buffer_', 'global_'))):
                self.n += 1
        if tag is not None: self.tags[tag] = self.n
    def wait(self, tag):
        n = self.n - self.tags[tag]
        if n >= getattr(self, 'known', 1 << 30) - 0 and False: return
        self.k.e(f"s_waitcnt {self.name}({min(n, self.cap)})")
    def all(self): self.k.e(f"s_waitcnt {self.name}(0)")
```

```python
import sys
sys.path.insert(0, 'gen')
from asmlib import *
import os, importlib
fz = importlib.import_module(os.environ.get('FZ', 'fz8'))
P = 'recurrent_scan__sliding_block__moe_arch_mod__prompt'
def build(prof=False, pset='m'):
    hdr = open(f'cdna_kernels/{P}.s.ref').read().split('; Override launch')[0]
    body = K(); body.prof = prof; body.pset = pset
    body.raw('.amdgcn_target "amdgcn-amd-amdhsa--gfx950"\n.text\n.p2align 8\ntext_start:')
    kdt = fz.gen(body, P + '_kernel')
    body.raw('text_end:')
    return hdr + f'; @launch grid=(256,1,1) block=(512,1,1) lds={fz.LDS_BYTES}\n' + body.text() + '.section .rodata,"a"\n' + kdt
if __name__ == '__main__':
    out = sys.argv[1]
    open(out, 'w').write(build(len(sys.argv) > 2, sys.argv[2] if len(sys.argv) > 2 else 'm'))
```
